```python
import torch

def _softmax(x, axis=-1):
    return torch.softmax(x, dim=axis)
def _gelu(x):
    return torch.nn.functional.gelu(x, approximate="tanh")
def _silu(x):
    return torch.nn.functional.silu(x)
def _sigmoid(x):
    return torch.sigmoid(x)
def _layernorm(x, axis=-1, eps=1e-5):
    m = x.mean(dim=axis, keepdim=True)
    v = x.var(dim=axis, keepdim=True, unbiased=False)
    return (x - m) / torch.sqrt(v + eps)
def _scatter_add(tgt, idx, src, axis=0):
    return tgt.clone().index_add_(axis, idx, src)
def _segment_sum(src, seg, n):
    out = torch.zeros((n,) + src.shape[1:], dtype=src.dtype)
    return out.index_add_(0, seg, src)
def _pad(x, pw):
    flat = tuple(v for pair in reversed(pw) for v in pair)
    return torch.nn.functional.pad(x, flat)

kernel_name = 'parallel_sum__spectral_fnet__moe_arch_mod__prompt'

def setup_inputs():

    _w = (lambda a: (lambda t: t.to(torch.bfloat16) if t.is_floating_point() else t)(torch.as_tensor(a)))
    def _A_setup():
        B, S, D = 1, 2048, 576
        ns = torch.arange(S)[:, None] * torch.arange(S)[None, :]
        nd = torch.arange(D)[:, None] * torch.arange(D)[None, :]
        Ws_re = torch.cos(-2.0 * torch.pi * ns / S).to(float)
        Ws_im = torch.sin(-2.0 * torch.pi * ns / S).to(float)
        Wd_re = torch.cos(-2.0 * torch.pi * nd / D).to(float)
        Wd_im = torch.sin(-2.0 * torch.pi * nd / D).to(float)
        return {
            "x": _w((lambda *s: torch.randn(*s, dtype=torch.bfloat16) * 0.1)(B, S, D)),
            "dft_seq_re": _w(Ws_re),
            "dft_seq_im": _w(Ws_im),
            "dft_hid_re": _w(Wd_re),
            "dft_hid_im": _w(Wd_im),
        }
    _A_in = _A_setup()

    def _B_setup():
        B, S, D, F, C = 1, 2048, 576, 4608, 1
        return {
            "x": _w((lambda *s: torch.randn(*s, dtype=torch.bfloat16) * 0.1)(B, S, D)),
            "w_r": _w((lambda *s: torch.randn(*s, dtype=torch.bfloat16) * 1.6)(D)),
            "w_gate": _w((lambda *s: torch.randn(*s, dtype=torch.bfloat16) * 0.4)(D, F)),
            "w_up": _w((lambda *s: torch.randn(*s, dtype=torch.bfloat16) * 0.4)(D, F)),
            "w_down": _w((lambda *s: torch.randn(*s, dtype=torch.bfloat16) * 0.4)(F, D)),
        }
    _B_in = _B_setup()

    return {
        "A_x": _A_in["x"],
        "A_dft_seq_re": _A_in["dft_seq_re"],
        "A_dft_seq_im": _A_in["dft_seq_im"],
        "A_dft_hid_re": _A_in["dft_hid_re"],
        "A_dft_hid_im": _A_in["dft_hid_im"],
        "B_x": _B_in["x"],
        "B_w_r": _B_in["w_r"],
        "B_w_gate": _B_in["w_gate"],
        "B_w_up": _B_in["w_up"],
        "B_w_down": _B_in["w_down"],
    }

def reference(A_x, A_dft_seq_re, A_dft_seq_im, A_dft_hid_re, A_dft_hid_im, B_x, B_w_r, B_w_gate, B_w_up, B_w_down):
    def _A_ref(x, dft_seq_re, dft_seq_im, dft_hid_re, dft_hid_im):
        a = torch.einsum("bsd,ed->bse", x, dft_hid_re)
        b = torch.einsum("bsd,ed->bse", x, dft_hid_im)
        y = torch.einsum("ts,bse->bte", dft_seq_re, a) - torch.einsum("ts,bse->bte", dft_seq_im, b)
        return y

    def _B_ref(x, w_r, w_gate, w_up, w_down):
        B, S, D = x.shape
        C = 1
        r = x @ w_r
        idx = torch.argsort(-r, axis=-1)[:, :C]
        idx_e = (lambda x, n, axis: torch.repeat_interleave(x, n, dim=axis))(idx.reshape(B, C, 1), D, axis=2)
        x_sel = (lambda x, i, axis: torch.take_along_dim(x, i, dim=axis))(x, idx_e, axis=1)
        g = _silu(x_sel @ w_gate)
        u = x_sel @ w_up
        y = (g * u) @ w_down
        r_sel = _sigmoid((lambda x, i, axis: torch.take_along_dim(x, i, dim=axis))(r, idx, axis=1))
        y = y * r_sel.reshape(B, C, 1)
        b_off = (torch.arange(B) * S).reshape(B, 1)
        flat_idx = (idx + b_off).reshape(B * C)
        zero = (x * 0.0).reshape(B * S, D)
        upd = _scatter_add(zero, flat_idx, y.reshape(B * C, D), axis=0)
        return x + upd.reshape(B, S, D)

    x = A_x
    xn = _layernorm(x, axis=-1)
    return x + _A_ref(xn, A_dft_seq_re, A_dft_seq_im, A_dft_hid_re, A_dft_hid_im) + _B_ref(xn, B_w_r, B_w_gate, B_w_up, B_w_down)
```

```python
import re

TRANS = ("v_exp_f32","v_log_f32","v_rcp_f32","v_rsq_f32","v_sqrt_f32","v_sin_f32","v_cos_f32")

def regs_of(tok):
    tok = tok.strip()
    neg = tok.startswith("-")
    if neg: tok = tok[1:]
    if tok.startswith("|") and tok.endswith("|"): tok = tok[1:-1]
    m = re.fullmatch(r"([vsa])(\d+)", tok)
    if m: return {(m.group(1), int(m.group(2)))}
    m = re.fullmatch(r"([vsa])\[(\d+):(\d+)\]", tok)
    if m: return {(m.group(1), i) for i in range(int(m.group(2)), int(m.group(3)) + 1)}
    if tok == "vcc": return {("s", "vcc")}
    if tok in ("vcc_lo", "vcc_hi"): return {("s", "vcc")}
    if tok == "exec": return {("s", "exec")}
    if tok == "m0": return {("s", "m0")}
    return set()

class Ins:
    def __init__(self, text):
        self.text = text
        t = text.split(";")[0].strip()
        self.label = None
        if t.endswith(":"):
            self.label = t[:-1]; self.op = None; self.kind = "label"; self.defs = set(); self.uses = set(); return
        if not t or t.startswith("."):
            self.op = None; self.kind = "none"; self.defs = set(); self.uses = set(); return
        parts = t.split(None, 1)
        op = parts[0]; self.op = op
        rest = parts[1] if len(parts) > 1 else ""
        ops = [o.strip() for o in re.split(r",(?![^\[]*\])", rest)] if rest else []
        mods = ""
        if ops:
            last = ops[-1].split(None, 1)
            ops[-1] = last[0] if last else ""
            mods = last[1] if len(last) > 1 else ""
        self.ops = ops; self.mods = mods
        R = [regs_of(o) for o in ops]
        allr = set().union(*R) if R else set()
        self.dpp = any(k in mods for k in ("row_", "quad_perm", "wave_", "bank_mask"))
        self.sdwa = "_sdwa" in op or "dst_sel" in mods
        d = set(); u = set()
        k = "other"
        if op.startswith("v_mfma"):
            k = "mfma"; d = R[0]; u = R[1] | R[2] | R[3]
            self.srcc = R[3]; self.srcab = R[1] | R[2]
            self.passes = 8 if "32x32" in op else 4
        elif op.startswith("v_permlane") and "swap" in op:
            k = "valu"; d = R[0] | R[1]; u = R[0] | R[1]
        elif op.startswith("v_cmp"):
            k = "valu"; d = R[0]; u = set().union(*R[1:])
            if op.startswith("v_cmpx"): d = d | {("s", "exec")}
        elif op.startswith("v_readlane") or op.startswith("v_readfirstlane"):
            k = "valu"; d = R[0]; u = set().union(*R[1:])
        elif op.startswith("v_add_co") or op.startswith("v_sub_co") or op.startswith("v_addc_co") or op.startswith("v_subb_co"):
            k = "valu"; d = R[0] | R[1]; u = set().union(*R[2:])
        elif op.startswith("v_"):
            k = "valu"; d = R[0]; u = set().union(*R[1:]) if len(R) > 1 else set()
            if op.startswith("v_cndmask") and len(ops) == 3: u |= {("s", "vcc")}
            if op.startswith("v_dot2c") or op.startswith("v_fmac") or op.startswith("v_pk_fmac") or self.dpp or self.sdwa or op.startswith("v_writelane"):
                u |= R[0]
        elif op.startswith("s_load") :
            k = "smem"; d = R[0]; u = set().union(*R[1:])
        elif op.startswith("s_cbranch") or op == "s_branch":
            k = "branch"; self.target = ops[0]
            if "vcc" in op: u = {("s", "vcc")}
            if "exec" in op: u = {("s", "exec")}
        elif op in ("s_nop", "s_waitcnt", "s_barrier", "s_endpgm", "s_sleep", "s_setprio"):
            k = op
        elif op.startswith("s_cmp") or op.startswith("s_bitcmp"):
            k = "salu"; u = allr
        elif op.startswith("s_"):
            k = "salu"; d = R[0] if R else set(); u = set().union(*R[1:]) if len(R) > 1 else set()
            if "saveexec" in op: d = d | {("s", "exec")}; u = u | {("s", "exec")}
        elif op.startswith("ds_read") :
            k = "ds"; d = R[0]; u = set().union(*R[1:])
        elif op.startswith("ds_"):
            k = "ds"; u = allr
            if "_rtn" in op or op.startswith("ds_bpermute") or op.startswith("ds_swizzle") or op.startswith("ds_permute"):
                d = R[0]; u = set().union(*R[1:])
        elif op.startswith("buffer_load") or op.startswith("global_load") or op.startswith("flat_load"):
            k = "vmem"
            if " lds" in (" " + mods) or "_lds_" in op:
                u = allr | {("s", "m0")}
            else:
                d = R[0]; u = set().union(*R[1:])
        elif op.startswith("buffer_") or op.startswith("global_") or op.startswith("flat_"):
            k = "vmem"; u = allr
            if ("atomic" in op) and (" sc0" in (" " + mods)) and op.startswith("global_"):
                d = R[0]
            if op.startswith("buffer_store") or op.startswith("buffer_atomic"): self.data = R[0] if R else set()
            elif op.startswith("global_store"): self.data = R[1]
            else: self.data = set()
            self.wide = ("x3" in op or "x4" in op)
        self.kind = k; self.defs = d; self.uses = u

def isv(r): return r[0] in ("v", "a")
def iss(r): return r[0] == "s"

def required(prod, cons):
    need = 0
    pk, ck = prod.kind, cons.kind
    pdv = {r for r in prod.defs if isv(r)}
    pds = {r for r in prod.defs if iss(r)}
    if pk == "valu":
        isdot = prod.op.startswith("v_dot")
        istrans = any(prod.op.startswith(t) for t in TRANS)
        if ck == "mfma" and pdv & cons.uses: need = max(need, 3 if isdot else 2)
        if ck == "valu":
            if pdv & cons.uses:
                if cons.dpp: need = max(need, 2)
                if cons.op.startswith("v_permlane"): need = max(need, 2)
                if cons.op.startswith("v_readlane") or cons.op.startswith("v_readfirstlane"): need = max(need, 1)
                if istrans and not any(cons.op.startswith(t) for t in TRANS): need = max(need, 1)
                if prod.sdwa or "op_sel" in prod.mods and not prod.op.startswith("v_pk"): need = max(need, 1)
            if isdot and (pdv & (cons.uses | cons.defs)):
                same = cons.op == prod.op
                if same and not prod.op.startswith("v_dot2c"):
                    ab = regs_of(cons.ops[1]) | regs_of(cons.ops[2])
                    if pdv & ab or (pdv & cons.defs and not (pdv & regs_of(cons.ops[3]))): need = max(need, 3)
                elif same:
                    ab = regs_of(cons.ops[1]) | regs_of(cons.ops[2])
                    if pdv & ab: need = max(need, 3)
                else: need = max(need, 3)
            if pds & cons.uses:
                need = max(need, 2)
                if cons.op.startswith("v_readlane") or cons.op.startswith("v_writelane"): need = max(need, 4)
            if ("s", "exec") in pds:
                if cons.dpp: need = max(need, 5)
                if cons.op.startswith("v_permlane") or cons.op.startswith("v_read"): need = max(need, 4)
        if ck in ("vmem", "ds") and isdot and pdv & cons.uses: need = max(need, 3)
        if ck == "vmem" and pds & cons.uses: need = max(need, 5)
        if ck == "mfma" and ("s", "exec") in pds: need = max(need, 4)
        if ck == "branch" and pds & cons.uses: need = max(need, 5) if False else need
    if pk == "mfma":
        P = prod.passes
        tab_c_ov = {4: 6, 8: 10}[P]; tab_rd = {4: 8, 8: 12}[P]; tab_war = {4: 3, 8: 7}[P]
        if ck == "mfma":
            if pdv & cons.srcab: need = max(need, tab_rd)
            if pdv & cons.srcc:
                if not (cons.srcc == pdv and cons.passes == P and cons.op == prod.op): need = max(need, tab_c_ov)
            if pdv & cons.defs and not (pdv & cons.srcc): need = max(need, tab_rd)
        elif ck in ("valu", "vmem", "ds"):
            if pdv & (cons.uses | cons.defs): need = max(need, tab_rd)
            if ck == "valu" and (prod.srcc & cons.defs): need = max(need, tab_war)
    if pk == "vmem" and getattr(prod, "wide", False) and ck == "valu":
        if prod.data & cons.defs: need = max(need, 2)
    if pk == "salu" and ("s", "m0") in pds and ck in ("vmem", "ds") and ("s", "m0") in cons.uses: need = max(need, 1)
    return need

def states(ins):
    if ins.kind in ("label", "none"): return 0
    if ins.kind == "s_nop": return int(ins.ops[0]) + 1
    return 1

def pad_hazards(lines, verbose=False):
    ins = [Ins(l) for l in lines]
    hist_at = {}
    for i, x in enumerate(ins):
        if x.kind == "branch":
            h = [y for y in ins[max(0, i - 40):i + 1] if states(y) > 0]
            hist_at.setdefault(x.target, []).append(h)
    out = []; cur = [[]]
    npad = 0
    for x in ins:
        if x.kind == "label":
            alts = hist_at.get(x.label, [])
            cur = cur + [list(h) for h in alts]
            out.append(x); continue
        if x.kind == "none":
            out.append(x); continue
        need = 0
        for h in cur:
            dist = 0
            for p in reversed(h):
                if dist >= 20: break
                r = required(p, x)
                if r > dist: need = max(need, r - dist)
                dist += states(p)
        while need > 0:
            n = min(need, 16)
            nop = Ins(f"s_nop {n-1}")
            out.append(nop); npad += n
            cur = [h[-40:] + [nop] for h in cur]
            need -= n
        out.append(x)
        cur = [h[-40:] + [x] for h in cur]
        if x.kind == "branch" and x.op == "s_branch": cur = [[]]
        if x.kind == "s_endpgm": cur = [[]]
        if len(cur) > 1:
            seen = [];
            for h in cur:
                key = tuple(id(y) for y in h[-24:])
                if key not in [k for k, _ in seen]: seen.append((key, h))
            cur = [h for _, h in seen]
    if verbose: print(f"; hazard pads: {npad} states")
    return [x.text for x in out]

class Asm:
    def __init__(self):
        self.lines = []
    def __call__(self, s):
        for l in s.strip("\n").split("\n"):
            l = l.strip()
            if l: self.lines.append(l)
    def label(self, n): self.lines.append(n + ":")
    def text(self): return "\n".join(("" if l.endswith(":") else "    ") + l for l in pad_hazards(self.lines))

def v(a, n=1): return f"v{a}" if n == 1 else f"v[{a}:{a+n-1}]"
def s(a, n=1): return f"s{a}" if n == 1 else f"s[{a}:{a+n-1}]"
```

```python
from asmlib import *
import math
WS_V = 0
WS_STATS = 0x240000
WS_KEYS = 0x248000
WS_PART = 0x250000
XBYTES = 2048*1152
WSBYTES = 0x10000000

def fl(x):
    import struct
    return "0x%08x" % struct.unpack("<I", struct.pack("<f", x))[0]

def srd(a, dst, ptr, nbytes):
    a(f"""s_mov_b32 s{dst}, s{ptr}
    s_mov_b32 s{dst+1}, s{ptr+1}
    s_mov_b32 s{dst+2}, {nbytes}
    s_mov_b32 s{dst+3}, 0x00020000""")

def cheb_group(a, T, th0, dl, c2, n, cosdst, sindst):
    a(f"v_cos_f32 v{T}, v{th0}")
    a(f"v_sin_f32 v{T+1}, v{th0}")
    a(f"v_add_f32 v{th0}, v{th0}, v{dl}")
    a(f"v_cos_f32 v{T+2}, v{th0}")
    a(f"v_sin_f32 v{T+3}, v{th0}")
    for j in range(2, n):
        a(f"v_pk_fma_f32 v[{T+2*j}:{T+2*j+1}], v[{c2}:{c2+1}], v[{T+2*j-2}:{T+2*j-1}], v[{T+2*j-4}:{T+2*j-3}] op_sel_hi:[0,1,1] neg_lo:[0,0,1] neg_hi:[0,0,1]")
    for i in range(n//2):
        a(f"v_cvt_pk_bf16_f32 v{cosdst+i}, v{T+4*i}, v{T+4*i+2}")
        a(f"v_cvt_pk_bf16_f32 v{sindst+i}, v{T+4*i+1}, v{T+4*i+3}")

def unpack_fwd(a, dst, src):
    a(f"v_lshlrev_b32 v{dst}, 16, v{src}")
    a(f"v_and_b32 v{dst+1}, 0xffff0000, v{src}")
def unpack_rev(a, dst, src):
    a(f"v_and_b32 v{dst}, 0xffff0000, v{src}")
    a(f"v_lshlrev_b32 v{dst+1}, 16, v{src}")

def reduce_ag(a, r, t):
    a(f"v_add_f32 v{r}, v{r}, v{r} row_ror:8 row_mask:0xf bank_mask:0xf")
def reduce_hi(a, regs, tmps):
    for r, t in zip(regs, tmps): a(f"v_mov_b32 v{t}, v{r}")
    for r, t in zip(regs, tmps): a(f"v_permlane16_swap_b32 v{r}, v{t}")
    for r, t in zip(regs, tmps): a(f"v_add_f32 v{r}, v{r}, v{t}")
    for r, t in zip(regs, tmps): a(f"v_mov_b32 v{t}, v{r}")
    for r, t in zip(regs, tmps): a(f"v_permlane32_swap_b32 v{r}, v{t}")
    for r, t in zip(regs, tmps): a(f"v_add_f32 v{r}, v{r}, v{t}")

def phase1(a, L):
    SX, SW, SWS = 12, 16, 20
    sS2, sQ, sP, sH, sWv = 24, 25, 26, 27, 28
    srd(a, SX, 4, XBYTES); srd(a, SW, 6, 1152); srd(a, SWS, 8, 0x400000)
    a(f"""s_lshr_b32 s29, s2, 3
    s_and_b32 s30, s2, 7
    s_lshl_b32 s30, s30, 3
    s_lshr_b32 s31, s29, 2
    s_add_u32 s{sS2}, s30, s31
    s_and_b32 s{sQ}, s29, 3
    s_and_b32 s{sP}, s{sQ}, 1
    s_lshr_b32 s{sH}, s{sQ}, 1
    v_lshrrev_b32 v5, 6, v0
    v_readfirstlane_b32 s{sWv}, v5
    v_and_b32 v5, 63, v0""")
    vL, vP, vQ, vP2, vQ2 = 5, 1, 2, 3, 4
    X = lambda i, k: 8 + i*16 + k*4
    W = lambda i, k: 56 + i*16 + k*4
    vRR, vAG = 204, 205
    a(f"""v_and_b32 v{vRR}, 7, v{vL}
    v_lshrrev_b32 v{vAG}, 3, v{vL}
    s_lshl_b32 s29, s{sWv}, 9
    s_add_u32 s29, s29, s{sS2}
    v_lshlrev_b32 v206, 6, v{vRR}
    v_add_u32 v206, s29, v206""")
    vROW = 206
    a(f"""s_movk_i32 s29, 1152
    v_mul_lo_u32 v207, v{vROW}, s29
    v_lshlrev_b32 v208, 4, v{vAG}
    v_add_u32 v{vP}, v207, v208
    v_sub_u32 v{vQ}, v207, v208
    v_add_u32 v{vQ}, 304, v{vQ}
    v_cmp_gt_u32 vcc, 2, v{vAG}
    v_mov_b32 v209, 0x7ff00000
    v_cndmask_b32 v{vP2}, v209, v{vP}, vcc
    v_cndmask_b32 v{vQ2}, v209, v{vQ}, vcc""")
    for i in range(3):
        p_, q_ = (vP, vQ) if i < 2 else (vP2, vQ2)
        a(f"buffer_load_dwordx4 v[{X(i,0)}:{X(i,0)+3}], v{p_}, s[{SX}:{SX+3}], 0 offen offset:{128*i}")
        a(f"buffer_load_dwordx4 v[{X(i,1)}:{X(i,1)+3}], v{q_}, s[{SX}:{SX+3}], 0 offen offset:{832-128*i}")
        a(f"buffer_load_dwordx4 v[{X(i,2)}:{X(i,2)+3}], v{q_}, s[{SX}:{SX+3}], 0 offen offset:{256-128*i}")
        a(f"buffer_load_dwordx4 v[{X(i,3)}:{X(i,3)+3}], v{p_}, s[{SX}:{SX+3}], 0 offen offset:{576+128*i}")
    a(f"""s_cmp_eq_u32 s{sQ}, 3
    s_cbranch_scc0 {L}_now""")
    a(f"""v_sub_u32 v210, 304, v208
    v_cndmask_b32 v211, v209, v208, vcc
    v_cndmask_b32 v212, v209, v210, vcc""")
    for i in range(3):
        p_, q_ = (208, 210) if i < 2 else (211, 212)
        a(f"buffer_load_dwordx4 v[{W(i,0)}:{W(i,0)+3}], v{p_}, s[{SW}:{SW+3}], 0 offen offset:{128*i}")
        a(f"buffer_load_dwordx4 v[{W(i,1)}:{W(i,1)+3}], v{q_}, s[{SW}:{SW+3}], 0 offen offset:{832-128*i}")
        a(f"buffer_load_dwordx4 v[{W(i,2)}:{W(i,2)+3}], v{q_}, s[{SW}:{SW+3}], 0 offen offset:{256-128*i}")
        a(f"buffer_load_dwordx4 v[{W(i,3)}:{W(i,3)+3}], v{p_}, s[{SW}:{SW+3}], 0 offen offset:{576+128*i}")
    a.label(f"{L}_now")
    vN, vG = 213, 214
    a(f"""v_and_b32 v{vN}, 15, v{vL}
    v_lshrrev_b32 v{vG}, 4, v{vL}""")
    HB = [104, 140]
    BETA = [200, 202]
    T = 216
    vFE, vTH, vDL, vC2, vU, vUt, vST = 232, 233, 234, 236, 238, 239, 240
    a(f"""v_cvt_f32_u32 v{vU}, v{vG}
    v_mov_b32 v{vUt}, {fl(257/1152)}
    v_mov_b32 v241, {fl(8/1152)}
    v_fmac_f32 v{vUt}, v{vU}, v241
    v_mov_b32 v241, {fl(16/1152)}
    v_mov_b32 v242, {fl(1/1152)}
    v_fma_f32 v{vU}, v{vU}, v241, v242""")
    def hidden(tile, sblk):
        a(f"""s_lshl_b32 s29, s{sblk}, 5
        s_add_u32 s29, s29, s{sP}
        s_add_u32 s29, s29, 1
        v_lshlrev_b32 v{vFE}, 1, v{vN}
        v_add_u32 v{vFE}, s29, v{vFE}
        v_cvt_f32_u32 v{vFE}, v{vFE}
        v_mul_f32 v{vDL}, {fl(1/576)}, v{vFE}
        v_mul_f32 v{vTH}, {fl(1/1152)}, v{vFE}
        v_cos_f32 v{vC2}, v{vDL}
        v_cos_f32 v{BETA[tile]}, v{vTH}
        v_sin_f32 v{BETA[tile]+1}, v{vTH}
        v_mul_f32 v{vST}, {fl(64/1152)}, v{vFE}
        v_add_f32 v{vC2}, v{vC2}, v{vC2}
        v_mul_f32 v241, v{vFE}, v{vU}""")
        for st in range(4):
            a(f"v_mov_b32 v{vTH}, v241")
            cheb_group(a, T, vTH, vDL, vC2, 8, HB[tile] + 4*st, HB[tile] + 18 + 4*st)
            if st < 3: a(f"v_add_f32 v241, v241, v{vST}")
        a(f"v_mul_f32 v{vTH}, v{vFE}, v{vUt}")
        cheb_group(a, T, vTH, vDL, vC2, 4, HB[tile] + 16, HB[tile] + 34)
    sB0, sB1 = 32, 33
    a(f"""s_mul_i32 s{sB0}, s{sH}, 5
    s_add_u32 s{sB0}, s{sB0}, s{sWv}
    s_movk_i32 s{sB1}, 4""")
    hidden(0, sB0)
    a(f"""s_lshl_b32 s34, s{sH}, 2
    s_or_b32 s34, s34, s{sWv}
    s_cmp_eq_u32 s34, 0
    s_cbranch_scc0 {L}_no2""")
    hidden(1, sB1)
    a.label(f"{L}_no2")
    FB = 176
    a(f"""v_and_b32 v243, 1, v{vN}
    v_mul_u32_u24 v243, 0x8000, v243
    v_lshlrev_b32 v244, 16, v243
    v_or_b32 v243, v243, v244
    v_mov_b32 v244, 0x80008000
    v_lshlrev_b32 v245, 8, v{vG}
    v_add_u32 v245, s{sS2}, v245
    v_cvt_f32_u32 v245, v245
    v_mul_f32 v245, {fl(1/2048)}, v245""")
    for tt in range(2):
        cb, sb, nb = FB + tt*12, FB + tt*12 + 4, FB + tt*12 + 8
        a(f"""v_add_u32 v{vFE}, {16*tt}, v{vN}
        v_cvt_f32_u32 v{vFE}, v{vFE}
        v_mul_f32 v{vDL}, {fl(1/32)}, v{vFE}
        v_mul_f32 v{vTH}, v{vFE}, v245
        v_cos_f32 v{vC2}, v{vDL}
        s_nop 0
        v_add_f32 v{vC2}, v{vC2}, v{vC2}""")
        cheb_group(a, T, vTH, vDL, vC2, 4, cb, sb)
        a(f"""v_xor_b32 v{cb+2}, v{cb}, v243
        v_xor_b32 v{cb+3}, v{cb+1}, v243
        v_xor_b32 v{sb+2}, v{sb}, v243
        v_xor_b32 v{sb+3}, v{sb+1}, v243""")
        for i in range(4): a(f"v_xor_b32 v{nb+i}, v{sb+i}, v244")
    vWA, vWT = 246, 247
    a(f"""s_lshr_b32 s29, s{sWv}, 1
    s_mul_i32 s29, s29, 4608
    s_and_b32 s30, s{sWv}, 1
    s_lshl_b32 s30, s30, 3
    v_add_u32 v248, s30, v{vRR}
    v_lshrrev_b32 v249, 2, v{vAG}
    v_lshlrev_b32 v249, 10, v249
    v_and_b32 v250, 3, v{vAG}
    v_lshlrev_b32 v250, 8, v250
    v_add_u32 v249, v249, v250
    v_lshlrev_b32 v250, 4, v248
    v_add3_u32 v{vWA}, v249, v250, s29
    v_lshlrev_b32 v249, 8, v{vAG}
    v_lshlrev_b32 v250, 3, v248
    v_add3_u32 v{vWT}, v249, v250, s29""")
    vSUM, vSQ, vDOT, vSW = 216, 217, 218, 219
    a(f"""v_mov_b32 v{vSUM}, 0
    v_mov_b32 v{vSQ}, 0
    v_mov_b32 v{vDOT}, 0
    v_mov_b32 v{vSW}, 0
    s_mov_b32 s35, 0x3f803f80""")
    a(f"""s_cmp_eq_u32 s{sQ}, 3
    s_cbranch_scc1 {L}_st3""")
    a("s_waitcnt vmcnt(0)")
    for r in range(8, 56):
        a(f"v_dot2_f32_bf16 v{vSUM}, v{r}, s35, v{vSUM}")
        a(f"v_dot2_f32_bf16 v{vSQ}, v{r}, v{r}, v{vSQ}")
    a(f"s_branch {L}_st")
    a.label(f"{L}_st3")
    a("s_waitcnt vmcnt(0)")
    for r in range(8, 56):
        a(f"v_dot2_f32_bf16 v{vSUM}, v{r}, s35, v{vSUM}")
        a(f"v_dot2_f32_bf16 v{vSQ}, v{r}, v{r}, v{vSQ}")
        a(f"v_dot2_f32_bf16 v{vDOT}, v{r}, v{r+48}, v{vDOT}")
        a(f"v_dot2_f32_bf16 v{vSW}, v{r+48}, s35, v{vSW}")
    a.label(f"{L}_st")
    regs = [vSUM, vSQ, vDOT, vSW]; tm = [220, 221, 222, 223]
    for r in regs: a(f"v_add_f32 v{r}, v{r}, v{r} row_ror:8 row_mask:0xf bank_mask:0xf")
    reduce_hi(a, regs, tm)
    vM, vRS = 224, 226
    a(f"""v_mul_f32 v{vM}, {fl(1/576)}, v{vSUM}
    v_mul_f32 v{vSQ}, {fl(1/576)}, v{vSQ}
    v_fma_f32 v{vSQ}, -v{vM}, v{vM}, v{vSQ}
    v_max_f32 v{vSQ}, 0, v{vSQ}
    v_add_f32 v{vSQ}, {fl(1e-5)}, v{vSQ}
    v_rsq_f32 v{vRS}, v{vSQ}
    s_cmp_eq_u32 s{sP}, 1
    s_cselect_b32 s29, 1.0, -1.0
    s_cselect_b32 s30, -4.0, 0
    v_mul_f32 v{vRS+1}, s29, v{vRS}
    v_mul_f32 v228, v{vM}, v{vRS}
    v_mul_f32 v228, s30, v228""")
    a(f"""s_cmp_eq_u32 s{sQ}, 3
    s_cbranch_scc0 {L}_nost
    v_fma_f32 v{vDOT}, -v{vM}, v{vSW}, v{vDOT}
    v_mul_f32 v{vDOT}, v{vDOT}, v{vRS}
    v_mov_b32 v220, v{vM}
    v_mov_b32 v221, v{vRS}
    v_mov_b32 v222, v{vDOT}
    v_mov_b32 v223, 0
    v_lshlrev_b32 v230, 4, v{vROW}
    v_add_u32 v230, {WS_STATS}, v230
    v_ashrrev_i32 v231, 31, v{vDOT}
    v_or_b32 v231, 0x80000000, v231
    v_xor_b32 v231, v231, v{vDOT}
    v_and_b32 v231, 0xfffff800, v231
    v_sub_u32 v225, 2047, v{vROW}
    v_or_b32 v231, v231, v225
    v_max_u32 v231, v231, v231 quad_perm:[1,0,3,2] row_mask:0xf bank_mask:0xf
    v_max_u32 v231, v231, v231 quad_perm:[2,3,0,1] row_mask:0xf bank_mask:0xf
    v_max_u32 v231, v231, v231 row_half_mirror row_mask:0xf bank_mask:0xf
    s_lshl_b32 s29, s{sS2}, 2
    s_add_u32 s29, s29, s{sWv}
    s_lshl_b32 s29, s29, 2
    s_add_u32 s29, s29, {WS_KEYS}
    v_mov_b32 v225, s29
    s_mov_b64 s[36:37], exec
    s_mov_b64 exec, 0xff
    buffer_store_dwordx4 v[220:223], v230, s[{SWS}:{SWS+3}], 0 offen
    s_mov_b64 exec, 1
    buffer_store_dword v231, v225, s[{SWS}:{SWS+3}], 0 offen
    s_mov_b64 exec, s[36:37]""")
    a.label(f"{L}_nost")
    Pf, Qf, Rf, Uf = 56, 64, 72, 80
    CO, SO = 88, 92
    for i in range(3):
        for j in range(4):
            unpack_fwd(a, Pf + 2*j, X(i, 0) + j)
            unpack_rev(a, Qf + 2*j, X(i, 1) + 3 - j)
            unpack_rev(a, Rf + 2*j, X(i, 2) + 3 - j)
            unpack_fwd(a, Uf + 2*j, X(i, 3) + j)
        for j in range(4):
            p_, q_, r_, u_ = Pf+2*j, Qf+2*j, Rf+2*j, Uf+2*j
            t0, t1 = 96, 98
            a(f"v_pk_add_f32 v[{t0}:{t0+1}], v[{p_}:{p_+1}], v[{q_}:{q_+1}]")
            a(f"v_pk_add_f32 v[{p_}:{p_+1}], v[{p_}:{p_+1}], v[{q_}:{q_+1}] neg_lo:[0,1] neg_hi:[0,1]")
            a(f"v_pk_add_f32 v[{t1}:{t1+1}], v[{u_}:{u_+1}], v[{r_}:{r_+1}]")
            a(f"v_pk_add_f32 v[{u_}:{u_+1}], v[{u_}:{u_+1}], v[{r_}:{r_+1}] neg_lo:[0,1] neg_hi:[0,1]")
            a(f"v_pk_fma_f32 v[{t1}:{t1+1}], v[{t1}:{t1+1}], v[{vRS}:{vRS+1}], v[228:229] op_sel:[0,1,0] op_sel_hi:[1,1,0]")
            a(f"v_pk_mul_f32 v[{u_}:{u_+1}], v[{u_}:{u_+1}], v[{vRS}:{vRS+1}] op_sel:[0,1] op_sel_hi:[1,1]")
            a(f"v_pk_fma_f32 v[{t0}:{t0+1}], v[{t0}:{t0+1}], v[{vRS}:{vRS+1}], v[{t1}:{t1+1}] op_sel_hi:[1,0,1]")
            a(f"v_pk_fma_f32 v[{p_}:{p_+1}], v[{p_}:{p_+1}], v[{vRS}:{vRS+1}], v[{u_}:{u_+1}] op_sel_hi:[1,0,1]")
            a(f"v_cvt_pk_bf16_f32 v{CO+j}, v{t0}, v{t0+1}")
            a(f"v_cvt_pk_bf16_f32 v{SO+j}, v{p_}, v{p_+1}")
        if i < 2:
            a(f"ds_write_b128 v{vWA}, v[{CO}:{CO+3}] offset:{2048*i}")
            a(f"ds_write_b128 v{vWA}, v[{SO}:{SO+3}] offset:{2048*i+9216}")
        else:
            a(f"""s_mov_b64 s[36:37], exec
            s_mov_b64 exec, 0xffff
            ds_write_b64 v{vWT}, v[{CO}:{CO+1}] offset:4096
            ds_write_b64 v{vWT}, v[{CO+2}:{CO+3}] offset:{4096+128}
            ds_write_b64 v{vWT}, v[{SO}:{SO+1}] offset:{4096+9216}
            ds_write_b64 v{vWT}, v[{SO+2}:{SO+3}] offset:{4096+128+9216}
            s_mov_b64 exec, s[36:37]""")
    a("s_waitcnt lgkmcnt(0)")
    a("s_barrier")
    AF = lambda f, rt, st: 8 + (f*2 + rt)*18 + st*4
    a(f"""v_lshlrev_b32 v1, 4, v{vL}
    v_lshlrev_b32 v2, 3, v{vL}""")
    for st in range(4):
        for f in range(2):
            for rt in range(2):
                a(f"ds_read_b128 v[{AF(f,rt,st)}:{AF(f,rt,st)+3}], v1 offset:{f*9216+rt*4608+st*1024}")
    for f in range(2):
        for rt in range(2):
            a(f"ds_read_b64 v[{AF(f,rt,4)}:{AF(f,rt,4)+1}], v2 offset:{f*9216+rt*4608+4096}")
    vVA = 3
    a(f"""s_mov_b32 s29, 73728
    v_mul_lo_u32 v{vVA}, v{vN}, s29
    v_lshlrev_b32 v4, 4, v{vG}
    s_mul_i32 s30, s{sS2}, 1152
    s_lshl_b32 s31, s{sP}, 6
    s_add_u32 s30, s30, s31
    v_add3_u32 v{vVA}, v{vVA}, v4, s30""")
    ACC = 80
    def tile(t, sblk, first):
        hb = HB[t]
        for st in range(5):
            if first:
                left = 16 + 4 - 4*(st+1) if st < 4 else 0
                a(f"s_waitcnt lgkmcnt({min(left,15)})")
            for f in range(2):
                for rt in range(2):
                    acc = ACC + f*8 + rt*4
                    c = "0" if st == 0 else f"v[{acc}:{acc+3}]"
                    if st < 4:
                        a(f"v_mfma_f32_16x16x32_bf16 v[{acc}:{acc+3}], v[{AF(f,rt,st)}:{AF(f,rt,st)+3}], v[{hb+18*f+4*st}:{hb+18*f+4*st+3}], {c}")
                    else:
                        a(f"v_mfma_f32_16x16x16_bf16 v[{acc}:{acc+3}], v[{AF(f,rt,4)}:{AF(f,rt,4)+1}], v[{hb+18*f+16}:{hb+18*f+17}], {c}")
        B = BETA[t]
        R0 = 96
        for rt in range(2):
            for j in range(2):
                c_ = ACC + rt*4 + 2*j; s_ = ACC + 8 + rt*4 + 2*j; o = R0 + rt*4 + 2*j
                a(f"v_pk_mul_f32 v[{o}:{o+1}], v[{c_}:{c_+1}], v[{B}:{B+1}] op_sel_hi:[1,0]")
                a(f"v_pk_fma_f32 v[{o}:{o+1}], v[{s_}:{s_+1}], v[{B}:{B+1}], v[{o}:{o+1}] op_sel:[0,1,0] op_sel_hi:[1,1,1]")
                a(f"v_pk_mul_f32 v[{s_}:{s_+1}], v[{s_}:{s_+1}], v[{B}:{B+1}] op_sel_hi:[1,0]")
                a(f"v_pk_fma_f32 v[{s_}:{s_+1}], v[{c_}:{c_+1}], v[{B}:{B+1}], v[{s_}:{s_+1}] op_sel:[0,1,0] op_sel_hi:[1,1,1] neg_lo:[1,0,0] neg_hi:[1,0,0]")
        A2C, A2S = 104 - 24, 104 - 20
        A2C, A2S = 80, 84
        for i in range(4): a(f"v_cvt_pk_bf16_f32 v{A2C+i}, v{R0+2*i}, v{R0+2*i+1}")
        for i in range(4): a(f"v_cvt_pk_bf16_f32 v{A2S+i}, v{ACC+8+2*i}, v{ACC+8+2*i+1}")
        O = 88
        for tt in range(2):
            cb, sb, nb = FB + tt*12, FB + tt*12 + 4, FB + tt*12 + 8
            o = O + tt*8
            a(f"v_mfma_f32_16x16x32_bf16 v[{o}:{o+3}], v[{A2C}:{A2C+3}], v[{cb}:{cb+3}], 0")
            a(f"v_mfma_f32_16x16x32_bf16 v[{o+4}:{o+7}], v[{A2C}:{A2C+3}], v[{sb}:{sb+3}], 0")
        for tt in range(2):
            cb, sb, nb = FB + tt*12, FB + tt*12 + 4, FB + tt*12 + 8
            o = O + tt*8
            a(f"v_mfma_f32_16x16x32_bf16 v[{o}:{o+3}], v[{A2S}:{A2S+3}], v[{nb}:{nb+3}], v[{o}:{o+3}]")
            a(f"v_mfma_f32_16x16x32_bf16 v[{o+4}:{o+7}], v[{A2S}:{A2S+3}], v[{cb}:{cb+3}], v[{o+4}:{o+7}]")
        a(f"s_lshl_b32 s29, s{sblk}, 7")
        for tt in range(2):
            o = O + tt*8; pk = 204 + tt*4
            for i in range(4): a(f"v_cvt_pk_bf16_f32 v{pk+i}, v{o+2*i}, v{o+2*i+1}")
            a(f"s_add_u32 s30, s29, {tt*16*73728}")
            a(f"buffer_store_dwordx4 v[{pk}:{pk+3}], v{vVA}, s[{SWS}:{SWS+3}], s30 offen")
    tile(0, sB0, True)
    a(f"""s_cmp_eq_u32 s34, 0
    s_cbranch_scc0 {L}_done""")
    tile(1, sB1, False)
    a.label(f"{L}_done")
```

```python
from asmlib import *
from k1 import *
OUTBYTES = XBYTES

def phase2(a, L, sU=2):
    SX, SO, SWS = 12, 16, 20
    sT1, sB, sWv = 24, 25, 26
    srd(a, SX, 4, XBYTES); srd(a, SO, 10, OUTBYTES); srd(a, SWS, 8, 0x400000)
    a(f"""s_and_b32 s29, s{sU}, 31
    s_lshr_b32 s{sB}, s{sU}, 5
    s_and_b32 s30, s29, 7
    s_lshr_b32 s31, s29, 3
    s_lshl_b32 s30, s30, 1
    s_lshr_b32 s32, s31, 1
    s_add_u32 s30, s30, s32
    s_sub_u32 s32, 32, s30
    s_cmp_eq_u32 s30, 0
    s_cselect_b32 s32, 16, s32
    s_and_b32 s31, s31, 1
    s_cmp_eq_u32 s31, 1
    s_cselect_b32 s{sT1}, s32, s30
    v_lshrrev_b32 v5, 6, v0
    v_readfirstlane_b32 s{sWv}, v5
    v_and_b32 v5, 63, v0""")
    vL = 5
    a(f"""v_lshrrev_b32 v1, 3, v0
    v_and_b32 v2, 7, v0
    s_movk_i32 s29, 1152
    v_mul_lo_u32 v3, v1, s29
    v_lshlrev_b32 v4, 4, v2
    s_mul_i32 s30, s{sT1}, 73728
    s_lshl_b32 s31, s{sB}, 7
    s_add_u32 s30, s30, s31
    v_add3_u32 v3, v3, v4, s30
    buffer_load_dwordx4 v[8:11], v3, s[{SWS}:{SWS+3}], 0 offen
    s_mov_b32 s31, {32*1152}
    buffer_load_dwordx4 v[12:15], v3, s[{SWS}:{SWS+3}], s31 offen""")
    a(f"""v_lshrrev_b32 v4, 2, v2
    v_mul_u32_u24 v4, 4224, v4
    v_and_b32 v6, 3, v2
    v_lshlrev_b32 v6, 3, v6
    v_lshlrev_b32 v7, 5, v1
    v_add3_u32 v4, v4, v6, v7""")
    vN, vG, vT, vTM = 16, 17, 18, 19
    a(f"""v_and_b32 v{vN}, 15, v{vL}
    v_lshrrev_b32 v{vG}, 4, v{vL}
    s_lshl_b32 s29, s{sWv}, 4
    v_add_u32 v{vT}, s29, v{vN}
    v_lshlrev_b32 v{vT}, 5, v{vT}
    v_add_u32 v{vT}, s{sT1}, v{vT}
    v_sub_u32 v{vTM}, 2048, v{vT}
    v_and_b32 v{vTM}, 2047, v{vTM}
    s_movk_i32 s29, 1152
    v_mul_lo_u32 v20, v{vT}, s29
    v_mul_lo_u32 v21, v{vTM}, s29
    v_lshlrev_b32 v22, 4, v{vG}
    s_lshl_b32 s30, s{sB}, 6
    s_add_u32 s31, s30, 2
    v_add3_u32 v20, v20, v22, s31
    s_sub_u32 s31, 1136, s30
    v_sub_u32 v21, v21, v22
    v_add_u32 v21, s31, v21
    buffer_load_dwordx4 v[24:27], v20, s[{SX}:{SX+3}], 0 offen
    buffer_load_dwordx4 v[28:31], v21, s[{SX}:{SX+3}], 0 offen
    v_lshlrev_b32 v22, 4, v{vT}
    v_lshlrev_b32 v23, 4, v{vTM}
    s_mov_b32 s31, {WS_STATS}
    buffer_load_dwordx2 v[32:33], v22, s[{SWS}:{SWS+3}], s31 offen
    buffer_load_dwordx2 v[34:35], v23, s[{SWS}:{SWS+3}], s31 offen""")
    a(f"""v_subrev_u32 v36, 2, v20
    s_cmp_eq_u32 s{sB}, 0
    s_cbranch_scc0 {L}_nc0
    buffer_load_ushort v37, v36, s[{SX}:{SX+3}], 0 offen""")
    a.label(f"{L}_nc0")
    T, vFE, vTH, vDL, vC2 = 40, 56, 57, 58, 60
    GC, GS = 64, 72
    a(f"""s_lshl_b32 s29, s{sWv}, 4
    v_add_u32 v{vFE}, s29, v{vN}
    v_cvt_f32_u32 v{vFE}, v{vFE}
    v_mul_f32 v{vDL}, {fl(1/64)}, v{vFE}
    v_cos_f32 v{vC2}, v{vDL}
    v_cvt_f32_u32 v62, v{vG}
    v_mul_f32 v62, 4.0, v62
    v_mul_f32 v{vTH}, v62, v{vDL}
    v_add_f32 v{vC2}, v{vC2}, v{vC2}
    v_and_b32 v63, 1, v{vN}
    v_mul_u32_u24 v63, 0x8000, v63
    v_lshlrev_b32 v61, 16, v63
    v_or_b32 v63, v63, v61
    v_mov_b32 v59, 0x80008000""")
    cheb_group(a, T, vTH, vDL, vC2, 4, GC, GS)
    a(f"""v_add_f32 v62, {fl(16.0)}, v62
    v_mul_f32 v{vTH}, v62, v{vDL}""")
    cheb_group(a, T, vTH, vDL, vC2, 4, GC + 2, GS + 2)
    for i in range(4):
        a(f"v_xor_b32 v{GS+i}, v{GS+i}, v59")
    for i in range(4):
        a(f"v_xor_b32 v{GC+4+i}, v{GC+i}, v63")
        a(f"v_xor_b32 v{GS+4+i}, v{GS+i}, v63")
    a(f"""s_waitcnt vmcnt(4)
    ds_write_b64 v4, v[8:9]
    ds_write_b64 v4, v[10:11] offset:2048
    ds_write_b64 v4, v[12:13] offset:1024
    ds_write_b64 v4, v[14:15] offset:{1024+2048}
    s_waitcnt lgkmcnt(0)
    s_barrier
    v_lshlrev_b32 v4, 3, v{vL}""") if False else None
    a(f"""s_cmp_eq_u32 s{sB}, 0
    s_cbranch_scc1 {L}_w5
    s_waitcnt vmcnt(4)
    s_branch {L}_w
    """)
    a.label(f"{L}_w5")
    a("s_waitcnt vmcnt(5)")
    a.label(f"{L}_w")
    a(f"""ds_write_b64 v4, v[8:9]
    ds_write_b64 v4, v[10:11] offset:2048
    ds_write_b64 v4, v[12:13] offset:1024
    ds_write_b64 v4, v[14:15] offset:{1024+2048}
    s_waitcnt lgkmcnt(0)
    s_barrier
    v_lshlrev_b32 v4, 3, v{vL}""")
    AF = lambda p, ri, st: 80 + ((p*2 + ri)*2 + st)*4
    for st in range(2):
        for p in range(2):
            for ri in range(2):
                base = p*4224 + ri*2048 + st*1024
                r = AF(p, ri, st)
                a(f"ds_read_b64_tr_b16 v[{r}:{r+1}], v4 offset:{base}")
                a(f"ds_read_b64_tr_b16 v[{r+2}:{r+3}], v4 offset:{base+512}")
    ACC = 112
    for st in range(2):
        a(f"s_waitcnt lgkmcnt({8 if st == 0 else 0})")
        for p in range(2):
            acc = ACC + 4*p
            c = "0" if st == 0 else f"v[{acc}:{acc+3}]"
            a(f"v_mfma_f32_16x16x32_bf16 v[{acc}:{acc+3}], v[{AF(p,0,st)}:{AF(p,0,st)+3}], v[{GC+4*st}:{GC+4*st+3}], {c}")
        for p in range(2):
            acc = ACC + 4*p
            a(f"v_mfma_f32_16x16x32_bf16 v[{acc}:{acc+3}], v[{AF(p,1,st)}:{AF(p,1,st)+3}], v[{GS+4*st}:{GS+4*st+3}], v[{acc}:{acc+3}]")
    a("s_waitcnt vmcnt(0)")
    a(f"""v_mul_f32 v32, v32, v33
    v_add_f32 v33, 1.0, v33
    v_mul_f32 v34, v34, v35
    v_add_f32 v35, 1.0, v35""")
    for p in range(2):
        for h in range(2):
            s_ = ACC + 4*p + 2*h
            a(f"v_pk_add_f32 v[{40+4*p+2*h}:{41+4*p+2*h}], v[{s_}:{s_+1}], v[32:33] op_sel_hi:[1,0] neg_lo:[0,1] neg_hi:[0,1]")
            a(f"v_pk_add_f32 v[{48+4*p+2*h}:{49+4*p+2*h}], v[{s_}:{s_+1}], v[34:35] op_sel_hi:[1,0] neg_lo:[0,1] neg_hi:[0,1]")
    for i in range(4):
        a(f"v_lshlrev_b32 v56, 16, v{24+i}")
        a(f"v_and_b32 v57, 0xffff0000, v{24+i}")
        a(f"v_fma_f32 v56, v56, v33, v{40+i}")
        a(f"v_fma_f32 v57, v57, v33, v{44+i}")
        a(f"v_cvt_pk_bf16_f32 v{64+i}, v56, v57")
    for i in range(4):
        a(f"v_lshlrev_b32 v58, 16, v{28+i}")
        a(f"v_and_b32 v59, 0xffff0000, v{28+i}")
        a(f"v_fma_f32 v58, v58, v35, v{48+4+3-i}")
        a(f"v_fma_f32 v59, v59, v35, v{48+3-i}")
        a(f"v_cvt_pk_bf16_f32 v{68+i}, v58, v59")
    a(f"""buffer_store_dwordx4 v[64:67], v20, s[{SO}:{SO+3}], 0 offen
    buffer_store_dwordx4 v[68:71], v21, s[{SO}:{SO+3}], 0 offen""")
    a(f"""s_cmp_eq_u32 s{sB}, 0
    s_cbranch_scc0 {L}_done
    v_lshlrev_b32 v37, 16, v37
    v_fma_f32 v37, v37, v33, -v32
    v_cvt_pk_bf16_f32 v37, v37, v37
    s_mov_b64 exec, 0xffff
    buffer_store_short v37, v36, s[{SO}:{SO+3}], 0 offen""")
    a.label(f"{L}_done")

def argmax(a, SWS, vL, vK, sIdx, tmp):
    a(f"""v_lshlrev_b32 v{tmp}, 4, v{vL}
    s_mov_b32 s29, {WS_KEYS}
    buffer_load_dwordx4 v[{vK}:{vK+3}], v{tmp}, s[{SWS}:{SWS+3}], s29 offen""")
def argmax_finish(a, vK, sIdx):
    a(f"""v_max_u32 v{vK}, v{vK}, v{vK+1}
    v_max_u32 v{vK+2}, v{vK+2}, v{vK+3}
    v_max_u32 v{vK}, v{vK}, v{vK+2}
    v_max_u32 v{vK}, v{vK}, v{vK} quad_perm:[1,0,3,2] row_mask:0xf bank_mask:0xf
    v_max_u32 v{vK}, v{vK}, v{vK} quad_perm:[2,3,0,1] row_mask:0xf bank_mask:0xf
    v_max_u32 v{vK}, v{vK}, v{vK} row_half_mirror row_mask:0xf bank_mask:0xf
    v_max_u32 v{vK}, v{vK}, v{vK} row_mirror row_mask:0xf bank_mask:0xf
    v_mov_b32 v{vK+1}, v{vK}
    v_permlane16_swap_b32 v{vK}, v{vK+1}
    v_max_u32 v{vK}, v{vK}, v{vK+1}
    v_mov_b32 v{vK+1}, v{vK}
    v_permlane32_swap_b32 v{vK}, v{vK+1}
    v_max_u32 v{vK}, v{vK}, v{vK+1}
    v_readfirstlane_b32 s{sIdx}, v{vK}
    s_and_b32 s{sIdx}, s{sIdx}, 0x7ff
    s_sub_u32 s{sIdx}, 2047, s{sIdx}""")

def moe(a, L, sU):
    SX, SD, SWS = 12, 16, 20
    sWv, sIdx = 26, 27
    srd(a, SX, 4, XBYTES); srd(a, SD, 40, 4608*1152); srd(a, SWS, 8, 0x400000)
    a(f"""v_lshrrev_b32 v5, 6, v0
    v_readfirstlane_b32 s{sWv}, v5
    v_and_b32 v5, 63, v0""")
    vL, vN, vG = 5, 6, 7
    a(f"""v_and_b32 v{vN}, 15, v{vL}
    v_lshrrev_b32 v{vG}, 4, v{vL}
    v_and_b32 v1, 3, v{vN}
    v_lshrrev_b32 v2, 2, v{vN}
    v_and_b32 v2, 1, v2
    v_lshrrev_b32 v3, 3, v{vN}
    v_lshlrev_b32 v4, 2, v2
    v_add_u32 v4, v4, v{vG}
    s_mul_i32 s29, s{sWv}, 144
    v_add_u32 v4, s29, v4
    s_movk_i32 s30, 9216
    v_mul_lo_u32 v8, v4, s30
    v_lshlrev_b32 v9, 4, v1
    s_lshl_b32 s31, s{sU}, 6
    v_add3_u32 v8, v8, v9, s31
    v_cmp_eq_u32 vcc, 1, v3
    v_mov_b32 v10, s36
    v_mov_b32 v11, s37
    v_mov_b32 v12, s38
    v_mov_b32 v13, s39
    v_cndmask_b32 v10, v10, v12, vcc
    v_cndmask_b32 v11, v11, v13, vcc
    v_add_co_u32 v10, vcc, v10, v8
    v_addc_co_u32 v11, vcc, 0, v11, vcc""")
    argmax(a, SWS, vL, 16, sIdx, 14)
    WG = 32
    for i in range(18):
        a(f"global_load_dwordx4 v[{WG+4*i}:{WG+4*i+3}], v[10:11], off")
        if i < 17:
            a(f"""v_add_co_u32 v10, vcc, 73728, v10
            v_addc_co_u32 v11, vcc, 0, v11, vcc""") if False else a(f"""s_mov_b32 s29, 73728
            v_add_co_u32 v10, vcc, s29, v10
            v_addc_co_u32 v11, vcc, 0, v11, vcc""")
    WD = 104
    a(f"""v_lshrrev_b32 v1, 3, v{vN}
    v_and_b32 v2, 7, v{vN}
    v_lshlrev_b32 v1, 2, v1
    v_add_u32 v1, v1, v{vG}
    s_lshl_b32 s29, s{sU}, 5
    v_add_u32 v1, s29, v1
    s_movk_i32 s30, 1152
    v_mul_lo_u32 v1, v1, s30
    v_lshlrev_b32 v2, 4, v2
    s_lshl_b32 s31, s{sWv}, 7
    v_add3_u32 v15, v1, v2, s31""")
    for k in range(2):
        for fg in range(4):
            a(f"s_mov_b32 s29, {fg*8*1152 + k*512}")
            a(f"buffer_load_dwordx4 v[{WD+16*k+4*fg}:{WD+16*k+4*fg+3}], v15, s[{SD}:{SD+3}], s29 offen")
    a(f"""s_cmp_eq_u32 s{sWv}, 0
    s_cbranch_scc0 {L}_nd3""")
    for fg in range(4):
        a(f"s_mov_b32 s29, {fg*8*1152 + 1024}")
        a(f"buffer_load_dwordx4 v[{WD+32+4*fg}:{WD+32+4*fg+3}], v15, s[{SD}:{SD+3}], s29 offen")
    a.label(f"{L}_nd3")
    a(f"""s_cmp_eq_u32 s{sWv}, 0
    s_cbranch_scc0 {L}_k8
    s_waitcnt vmcnt(30)
    s_branch {L}_k""")
    a.label(f"{L}_k8")
    a("s_waitcnt vmcnt(26)")
    a.label(f"{L}_k")
    argmax_finish(a, 16, sIdx)
    a(f"""s_mul_i32 s29, s{sIdx}, 1152
    s_mul_i32 s30, s{sWv}, 288
    s_add_u32 s29, s29, s30
    v_lshlrev_b32 v1, 1, v{vL}
    buffer_load_ushort v16, v1, s[{SX}:{SX+3}], s29 offen
    buffer_load_ushort v17, v1, s[{SX}:{SX+3}], s29 offen offset:128
    buffer_load_ushort v18, v1, s[{SX}:{SX+3}], s29 offen offset:256
    s_lshl_b32 s30, s{sIdx}, 4
    s_add_u32 s30, s30, {WS_STATS}
    v_mov_b32 v2, 0
    buffer_load_dwordx2 v[20:21], v2, s[{SWS}:{SWS+3}], s30 offen
    s_waitcnt vmcnt(0)""")
    for j in range(3):
        a(f"""v_lshlrev_b32 v{16+j}, 16, v{16+j}
        v_sub_f32 v{16+j}, v{16+j}, v20
        v_mul_f32 v{16+j}, v{16+j}, v21
        v_cvt_pk_bf16_f32 v{16+j}, v{16+j}, v{16+j}""")
    a(f"""v_lshlrev_b32 v1, 2, v{vL}
    s_lshl_b32 s29, s{sWv}, 10
    v_add_u32 v1, s29, v1
    ds_write_b32 v1, v16
    ds_write_b32 v1, v17 offset:256
    ds_write_b32 v1, v18 offset:512""")
    MK = 22
    a(f"""v_and_b32 v1, 7, v{vN}
    v_and_b32 v2, 1, v1
    v_lshrrev_b32 v1, 1, v1
    v_mov_b32 v3, 0xffff
    v_mov_b32 v4, 0xffff0000
    v_cmp_eq_u32 vcc, 1, v2
    v_cndmask_b32 v3, v3, v4, vcc""")
    for i in range(4):
        a(f"""v_cmp_eq_u32 vcc, {i}, v1
        v_cndmask_b32 v{MK+i}, 0, v3, vcc""")
    a(f"""v_lshrrev_b32 v1, 3, v{vN}
    v_lshlrev_b32 v1, 2, v1
    v_add_u32 v1, v1, v{vG}
    v_lshlrev_b32 v1, 2, v1
    s_lshl_b32 s29, s{sWv}, 10
    v_add_u32 v26, s29, v1
    s_waitcnt lgkmcnt(0)""")
    XS = 152
    for i in range(18): a(f"ds_read_b32 v{XS+i}, v26 offset:{32*i}")
    ACC = 176
    AB = [180, 184]
    a("s_waitcnt lgkmcnt(0)")
    for i in range(18):
        ab = AB[i & 1]
        for j in range(4): a(f"v_and_b32 v{ab+j}, v{XS+i}, v{MK+j}")
        c = "0" if i == 0 else f"v[{ACC}:{ACC+3}]"
        a(f"v_mfma_f32_16x16x32_bf16 v[{ACC}:{ACC+3}], v[{ab}:{ab+3}], v[{WG+4*i}:{WG+4*i+3}], {c}")
    a(f"""v_lshrrev_b32 v1, 1, v{vG}
    v_lshrrev_b32 v2, 2, v{vN}
    v_and_b32 v2, 1, v2
    v_cmp_eq_u32 vcc, v1, v2
    v_lshlrev_b32 v1, 8, v1
    v_lshrrev_b32 v3, 3, v{vN}
    v_lshlrev_b32 v3, 7, v3
    v_and_b32 v4, 3, v{vN}
    v_lshlrev_b32 v4, 5, v4
    v_add3_u32 v1, v1, v3, v4
    v_and_b32 v3, 1, v{vG}
    v_lshlrev_b32 v3, 4, v3
    s_lshl_b32 s29, s{sWv}, 9
    v_add3_u32 v1, v1, v3, s29
    s_and_saveexec_b64 s[30:31], vcc
    ds_write_b128 v1, v[{ACC}:{ACC+3}] offset:4096
    s_mov_b64 exec, s[30:31]
    s_waitcnt lgkmcnt(0)
    s_barrier""")
    a(f"""v_and_b32 v1, 31, v{vL}
    v_lshrrev_b32 v2, 5, v{vL}
    v_lshlrev_b32 v1, 2, v1
    v_lshlrev_b32 v2, 7, v2
    v_add_u32 v1, v1, v2""")
    for k in range(8): a(f"ds_read_b32 v{152+k}, v1 offset:{4096+256*k}")
    a("s_waitcnt lgkmcnt(0)")
    a(f"""v_add_f32 v152, v152, v153
    v_add_f32 v154, v154, v155
    v_add_f32 v156, v156, v157
    v_add_f32 v158, v158, v159
    v_add_f32 v152, v152, v154
    v_add_f32 v156, v156, v158
    v_add_f32 v152, v152, v156
    v_mov_b32 v153, v152
    v_permlane32_swap_b32 v152, v153""")
    a(f"""v_cvt_pk_bf16_f32 v152, v152, v153
    v_and_b32 v153, 0xffff0000, v152
    v_lshlrev_b32 v152, 16, v152
    v_mul_f32 v154, {fl(-1.4426950408889634)}, v152
    v_exp_f32 v154, v154
    v_add_f32 v154, 1.0, v154
    v_rcp_f32 v154, v154
    v_mul_f32 v154, v152, v154
    v_cvt_pk_bf16_f32 v154, v154, v154
    v_lshlrev_b32 v154, 16, v154
    v_mul_f32 v154, v154, v153
    v_cvt_pk_bf16_f32 v154, v154, v154""")
    a(f"""v_and_b32 v1, 31, v{vL}
    v_lshlrev_b32 v1, 2, v1
    s_lshl_b32 s29, s{sWv}, 10
    v_add_u32 v1, s29, v1
    ds_write_b32 v1, v154
    s_waitcnt lgkmcnt(0)""")
    for fg in range(4): a(f"ds_read_b32 v{XS+fg}, v26 offset:{32*fg}")
    a("s_waitcnt lgkmcnt(0)")
    AD = 188
    for fg in range(4):
        for j in range(4): a(f"v_and_b32 v{AD+4*fg+j}, v{XS+fg}, v{MK+j}")
    def down(k):
        acc = 204 + 4*k
        for fg in range(4):
            c = "0" if fg == 0 else f"v[{acc}:{acc+3}]"
            a(f"v_mfma_f32_16x16x32_bf16 v[{acc}:{acc+3}], v[{AD+4*fg}:{AD+4*fg+3}], v[{WD+16*k+4*fg}:{WD+16*k+4*fg+3}], {c}")
    down(0); down(1)
    a(f"""v_lshrrev_b32 v1, 1, v{vG}
    v_lshrrev_b32 v2, 3, v{vN}
    v_cmp_eq_u32 vcc, v1, v2
    v_mul_u32_u24 v1, 2304, v1
    v_and_b32 v3, 7, v{vN}
    v_lshlrev_b32 v3, 5, v3
    v_and_b32 v4, 1, v{vG}
    v_lshlrev_b32 v4, 4, v4
    v_add3_u32 v1, v1, v3, v4
    s_mul_i32 s29, s{sU}, 4608
    s_lshl_b32 s30, s{sWv}, 8
    s_add_u32 s29, s29, s30
    s_add_u32 s29, s29, {WS_PART}
    s_and_saveexec_b64 s[32:33], vcc
    buffer_store_dwordx4 v[204:207], v1, s[{SWS}:{SWS+3}], s29 offen
    s_add_u32 s30, s29, 1024
    buffer_store_dwordx4 v[208:211], v1, s[{SWS}:{SWS+3}], s30 offen
    s_mov_b64 exec, s[32:33]
    s_cmp_eq_u32 s{sWv}, 0
    s_cbranch_scc0 {L}_done""")
    down(2)
    a(f"""s_add_u32 s30, s29, 2048
    s_and_saveexec_b64 s[32:33], vcc
    buffer_store_dwordx4 v[212:215], v1, s[{SWS}:{SWS+3}], s30 offen""")
    a.label(f"{L}_done")

def final(a, L):
    SO, SWS, SP = 16, 20, 12
    sWv, sIdx = 26, 27
    srd(a, SO, 10, OUTBYTES); srd(a, SWS, 8, 0x400000)
    a(f"""s_add_u32 s4, s8, {WS_PART}
    s_addc_u32 s5, s9, 0""")
    srd(a, SP, 4, 288*2304)
    a(f"""v_lshrrev_b32 v5, 6, v0
    v_readfirstlane_b32 s{sWv}, v5
    v_and_b32 v5, 63, v0""")
    argmax(a, SWS, 5, 16, sIdx, 14)
    a(f"""v_and_b32 v1, 3, v0
    v_lshrrev_b32 v2, 2, v0
    v_mul_u32_u24 v2, 2304, v2
    v_lshlrev_b32 v1, 4, v1
    s_lshl_b32 s29, s2, 6
    v_add3_u32 v1, v1, v2, s29""")
    for k in range(5):
        a(f"s_mov_b32 s29, {k*64*2304}")
        a(f"buffer_load_dwordx4 v[{32+4*k}:{35+4*k}], v1, s[{SP}:{SP+3}], s29 offen")
    a("s_waitcnt vmcnt(5)")
    argmax_finish(a, 16, sIdx)
    a(f"""s_mul_i32 s29, s{sIdx}, 1152
    s_lshl_b32 s30, s2, 5
    s_add_u32 s29, s29, s30
    v_and_b32 v3, 3, v0
    v_lshlrev_b32 v3, 3, v3
    buffer_load_dwordx2 v[20:21], v3, s[{SO}:{SO+3}], s29 offen
    s_lshl_b32 s30, s{sIdx}, 4
    s_add_u32 s30, s30, {WS_STATS+8}
    v_mov_b32 v4, 0
    buffer_load_dword v22, v4, s[{SWS}:{SWS+3}], s30 offen
    s_waitcnt vmcnt(2)""")
    for k in range(1, 5):
        a(f"v_pk_add_f32 v[32:33], v[32:33], v[{32+4*k}:{33+4*k}]")
        a(f"v_pk_add_f32 v[34:35], v[34:35], v[{34+4*k}:{35+4*k}]")
    for r in range(32, 36):
        a(f"v_add_f32 v{r}, v{r}, v{r} row_ror:4 row_mask:0xf bank_mask:0xf")
    for r in range(32, 36):
        a(f"v_add_f32 v{r}, v{r}, v{r} row_ror:8 row_mask:0xf bank_mask:0xf")
    reduce_hi(a, [32, 33, 34, 35], [36, 37, 38, 39])
    a(f"""v_and_b32 v6, 3, v5
    v_lshlrev_b32 v6, 4, v6
    s_lshl_b32 s30, s{sWv}, 6
    v_add_u32 v7, s30, v6
    ds_write_b128 v7, v[32:35]
    s_waitcnt lgkmcnt(0)
    s_barrier
    s_cmp_eq_u32 s{sWv}, 0
    s_cbranch_scc0 {L}_done
    ds_read_b128 v[32:35], v6
    ds_read_b128 v[36:39], v6 offset:64
    ds_read_b128 v[40:43], v6 offset:128
    ds_read_b128 v[44:47], v6 offset:192
    s_waitcnt vmcnt(0) lgkmcnt(0)
    v_pk_add_f32 v[32:33], v[32:33], v[36:37]
    v_pk_add_f32 v[34:35], v[34:35], v[38:39]
    v_pk_add_f32 v[40:41], v[40:41], v[44:45]
    v_pk_add_f32 v[42:43], v[42:43], v[46:47]
    v_pk_add_f32 v[32:33], v[32:33], v[40:41]
    v_pk_add_f32 v[34:35], v[34:35], v[42:43]
    v_mul_f32 v22, {fl(-1.4426950408889634)}, v22
    v_exp_f32 v22, v22
    v_add_f32 v22, 1.0, v22
    v_rcp_f32 v22, v22
    v_lshlrev_b32 v36, 16, v20
    v_and_b32 v37, 0xffff0000, v20
    v_lshlrev_b32 v38, 16, v21
    v_and_b32 v39, 0xffff0000, v21
    v_fma_f32 v36, v32, v22, v36
    v_fma_f32 v37, v33, v22, v37
    v_fma_f32 v38, v34, v22, v38
    v_fma_f32 v39, v35, v22, v39
    v_cvt_pk_bf16_f32 v36, v36, v37
    v_cvt_pk_bf16_f32 v37, v38, v39
    s_mov_b64 exec, 0xf
    buffer_store_dwordx2 v[36:37], v3, s[{SO}:{SO+3}], s29 offen""")
    a.label(f"{L}_done")
```

```python
import sys
sys.path.insert(0, "gen")
from asmlib import *
from k1 import *
from k2 import *
NAME = "parallel_sum__spectral_fnet__moe_arch_mod__prompt"
HDR = open("cdna_kernels/" + NAME + ".s.ref").read().split("; Override launch")[0]

def desc(name, vgpr, sgpr=102):
    acc = (vgpr + 3)//4*4
    return f""".amdhsa_kernel {name}
  .amdhsa_next_free_vgpr {vgpr}
  .amdhsa_next_free_sgpr {sgpr}
  .amdhsa_accum_offset {acc}
  .amdhsa_group_segment_fixed_size 0
  .amdhsa_kernarg_size 104
  .amdhsa_user_sgpr_count 2
  .amdhsa_user_sgpr_kernarg_segment_ptr 1
  .amdhsa_system_sgpr_workgroup_id_x 1
.end_amdhsa_kernel
"""
def kern(name, body):
    return f""".globl {name}
.p2align 8
.type {name},@function
{name}:
{body}
    s_endpgm
"""
def k1():
    a = Asm()
    a("""s_cmp_ge_u32 s2, 256
    s_cbranch_scc1 k1_end
    s_load_dwordx2 s[4:5], s[0:1], 0
    s_load_dwordx2 s[6:7], s[0:1], 48
    s_load_dwordx2 s[8:9], s[0:1], 96
    s_waitcnt lgkmcnt(0)""")
    phase1(a, "k1")
    a.label("k1_end")
    return a.text()
def k2():
    a = Asm()
    a("""s_cmp_ge_u32 s2, 432
    s_cbranch_scc1 k2_end
    s_load_dwordx2 s[4:5], s[0:1], 0
    s_load_dwordx4 s[36:39], s[0:1], 56
    s_load_dwordx2 s[40:41], s[0:1], 72
    s_load_dwordx2 s[10:11], s[0:1], 80
    s_load_dwordx2 s[8:9], s[0:1], 96
    s_waitcnt lgkmcnt(0)
    s_cmp_ge_u32 s2, 144
    s_cbranch_scc1 k2_p2""")
    a("s_mov_b32 s3, s2")
    moe(a, "k2m", 3)
    a("s_endpgm")
    a.label("k2_p2")
    a("s_sub_u32 s3, s2, 144")
    phase2(a, "k2p", 3)
    a.label("k2_end")
    return a.text()
def k3():
    a = Asm()
    a("""s_cmp_ge_u32 s2, 36
    s_cbranch_scc1 k3_end
    s_load_dwordx2 s[10:11], s[0:1], 80
    s_load_dwordx2 s[8:9], s[0:1], 96
    s_waitcnt lgkmcnt(0)""")
    final(a, "k3")
    a.label("k3_end")
    return a.text()

extra = int(sys.argv[2]) if len(sys.argv) > 2 else 0
launch = f"""; @launch kernel=k1_kernel grid=(256,1,1) block=(256,1,1) lds=18432
; @launch kernel=k2_kernel grid=(432,1,1) block=(256,1,1) lds=8448
; @launch kernel=k3_kernel grid=(36,1,1) block=(256,1,1) lds=256
"""
for i in range(extra): launch += "; @launch kernel=k0_kernel grid=(1,1,1) block=(64,1,1) lds=0\n"
src = HDR + launch + """.amdgcn_target "amdgcn-amd-amdhsa--gfx950"
.text
""" + kern("k1_kernel", k1()) + kern("k2_kernel", k2()) + kern("k3_kernel", k3())
if extra: src += kern("k0_kernel", "")
src += """.section .rodata,"a"
.p2align 6
""" + desc("k1_kernel", 252) + ".p2align 6\n" + desc("k2_kernel", 216) + ".p2align 6\n" + desc("k3_kernel", 56)
if extra: src += ".p2align 6\n" + desc("k0_kernel", 8, 16)
open(sys.argv[1], "w").write(src)
print("written", sys.argv[1], len(src))
```

```python
import sys
sys.path.insert(0,"gen")
base = open("q_123.s").read()
assert all((c*3641)>>18 == c//72 for c in range(1536))
def consumer(cols, per, mods, nthr=256):
    cpr = cols//8; rpi = 64//cpr; nw = nthr//64
    rows_w = 576//(nw//2)
    b = f"""    s_and_b32 s4, s3, 7
    s_mul_i32 s4, s4, {per}
    s_lshr_b32 s5, s3, 3
    s_add_u32 s3, s4, s5
    v_lshrrev_b32 v5, 6, v0
    s_nop 1
    v_readfirstlane_b32 s26, v5
    v_and_b32 v5, 63, v0
    s_and_b32 s27, s26, 1
    s_cmp_eq_u32 s27, 1
    s_cselect_b32 s8, s22, s20
    s_cselect_b32 s9, s23, s21
    v_lshrrev_b32 v1, {cpr.bit_length()-1}, v5
    v_and_b32 v2, {cpr-1}, v5
    s_lshr_b32 s28, s26, 1
    s_mul_i32 s28, s28, {rows_w}
    v_add_u32 v1, s28, v1
    s_movk_i32 s29, 9216
    v_mul_lo_u32 v1, v1, s29
    v_lshlrev_b32 v2, 4, v2
    s_mul_i32 s30, s3, {cols*2}
    v_add3_u32 v1, v1, v2, s30
"""
    r = 8
    for i in range(rows_w//rpi):
        b += f"    s_mov_b32 s29, {i*rpi*9216}\n    buffer_load_dwordx4 v[{r}:{r+3}], v1, s[8:11], s29 offen {mods}\n"
        r = r+4 if r < 200 else 8
    tot = cols*1152
    b += f"    s_mul_i32 s30, s3, {tot}\n    v_lshlrev_b32 v2, 4, v0\n    v_add_u32 v2, s30, v2\n"
    k = 0; st = nthr*16
    while k*st < tot:
        if (k+1)*st > tot:
            b += f"    v_cmp_gt_u32 vcc, {(tot-k*st)//16}, v0\n    s_and_saveexec_b64 s[32:33], vcc\n"
        b += f"    s_mov_b32 s29, {k*st}\n    buffer_load_dwordx4 v[{r}:{r+3}], v2, s[12:15], s29 offen {mods}\n"
        r = r+4 if r < 200 else 8
        k += 1
    return b
def prefetch(mods):
    b = """    s_and_b32 s4, s2, 7
    s_lshr_b32 s5, s2, 3
    s_mul_i32 s28, s4, 1152
    s_mul_i32 s29, s5, 165888
    s_add_u32 s28, s28, s29
    s_mul_i32 s30, s4, 663552
    s_mul_i32 s31, s5, 20736
    s_add_u32 s30, s30, s31
    s_mov_b32 s16, s22
    s_mov_b32 s17, s23
    s_mov_b32 s18, 5308416
    s_mov_b32 s19, 0x00020000
    s_mov_b32 s8, s20
    s_mov_b32 s9, s21
    s_movk_i32 s33, 3641
    s_movk_i32 s34, 9216
"""
    for i in range(6):
        b += f"""    v_add_u32 v1, {256*i}, v0
    v_mul_u32_u24 v2, s33, v1
    v_lshrrev_b32 v2, 18, v2
    v_mul_u32_u24 v3, 72, v2
    v_sub_u32 v3, v1, v3
    v_mul_lo_u32 v2, v2, s34
    v_lshl_add_u32 v2, v3, 4, v2
    v_lshlrev_b32 v4, 4, v1
"""
        if i == 5: b += "    v_cmp_gt_u32 vcc, 16, v0\n    s_and_saveexec_b64 s[36:37], vcc\n"
        b += f"""    buffer_load_dwordx4 v[8:11], v2, s[8:11], s28 offen {mods}
    buffer_load_dwordx4 v[12:15], v2, s[16:19], s28 offen {mods}
    buffer_load_dwordx4 v[16:19], v4, s[12:15], s30 offen {mods}
"""
    return b
def mk(out, kind, mods="", pmods=""):
    hdr = """    s_load_dwordx4 s[20:23], s[0:1], 56
    s_load_dwordx2 s[24:25], s[0:1], 72
    s_waitcnt lgkmcnt(0)
    s_mov_b32 s10, 5308416
    s_mov_b32 s11, 0x00020000
    s_mov_b32 s12, s24
    s_mov_b32 s13, s25
    s_mov_b32 s14, 5308416
    s_mov_b32 s15, 0x00020000
"""
    nthr = 256
    if kind == "two":
        nwg = 400
        b = f"    s_cmp_ge_u32 s2, {nwg}\n    s_cbranch_scc1 kz_end\n" + hdr + "    s_cmp_ge_u32 s2, 256\n    s_cbranch_scc1 kz_c\n" + prefetch(pmods) + "    s_waitcnt vmcnt(0)\n    s_endpgm\nkz_c:\n    s_sub_u32 s3, s2, 256\n" + consumer(32, 18, mods)
    elif kind == "pre":
        nwg = 256
        b = f"    s_cmp_ge_u32 s2, {nwg}\n    s_cbranch_scc1 kz_end\n" + hdr + prefetch(pmods)
    else:
        cols, nthr = kind; nwg = 4608//cols
        b = f"    s_cmp_ge_u32 s2, {nwg}\n    s_cbranch_scc1 kz_end\n" + hdr + "    s_mov_b32 s3, s2\n" + consumer(cols, nwg//8, mods, nthr)
    b += "    s_waitcnt vmcnt(0)\nkz_end:\n"
    kern = f".globl kz_kernel\n.p2align 8\n.type kz_kernel,@function\nkz_kernel:\n{b}\n    s_endpgm\n"
    desc = """.p2align 6
.amdhsa_kernel kz_kernel
  .amdhsa_next_free_vgpr 208
  .amdhsa_next_free_sgpr 40
  .amdhsa_accum_offset 208
  .amdhsa_group_segment_fixed_size 0
  .amdhsa_kernarg_size 104
  .amdhsa_user_sgpr_count 2
  .amdhsa_user_sgpr_kernarg_segment_ptr 1
  .amdhsa_system_sgpr_workgroup_id_x 1
.end_amdhsa_kernel
"""
    s = base.replace("; @launch kernel=k1_kernel", f"; @launch kernel=kz_kernel grid=({nwg},1,1) block=({nthr},1,1) lds=0\n; @launch kernel=k1_kernel", 1)
    s = s.replace('.section .rodata,"a"', kern + '.section .rodata,"a"')
    s += desc
    open(out, "w").write(s)
mk("t_two.s","two")
mk("t_pre.s","pre")
mk("t_prent.s","pre",pmods="nt")
mk("t_32x512.s",(32,512))
mk("t_64x.s",(64,256))
mk("t_64x512.s",(64,512))
mk("t_32xnt.s",(32,256),"nt")
mk("t_32x.s",(32,256))
```

```python
from asmlib import *
import math
WS_V = 0
WS_STATS = 0x240000
WS_KEYS = 0x248000
WS_PART = 0x250000
XBYTES = 2048*1152
WSBYTES = 0x10000000

def fl(x):
    import struct
    return "0x%08x" % struct.unpack("<I", struct.pack("<f", x))[0]

WS_STAMP = 0x300000
STAMPS = False
def stamp(a, j):
    if STAMPS: a(f"s_memrealtime s[{64+2*j}:{65+2*j}]")
def stamp_init(a):
    if STAMPS:
        for j in range(16): a(f"s_mov_b32 s{64+j}, 0")
def stamp_flush(a, kern, nst=8, swg="s2", wsptr=8, tid=0):
    if not STAMPS: return
    a(f"""s_mov_b64 exec, -1
    s_waitcnt vmcnt(0)
    s_memrealtime s[78:79]
    s_mov_b32 s92, s{wsptr}
    s_mov_b32 s93, s{wsptr+1}
    s_mov_b32 s94, 0x400000
    s_mov_b32 s95, 0x00020000
    s_add_u32 s96, {swg}, {kern*512}
    s_mul_i32 s96, s96, {nst*8}
    s_add_u32 s96, s96, {WS_STAMP}
    s_waitcnt lgkmcnt(0)
    v_mov_b32 v253, s96
    v_mov_b32 v254, {tid}
    v_cmp_eq_u32 s[98:99], v254, v0
    s_and_saveexec_b64 s[96:97], s[98:99]""")
    for j in range(8):
        a(f"""v_mov_b32 v254, s{64+2*j}
        v_mov_b32 v255, s{65+2*j}
        buffer_store_dwordx2 v[254:255], v253, s[92:95], 0 offen offset:{8*j}
        s_nop 1""")
    a("s_mov_b64 exec, s[96:97]")

def srd(a, dst, ptr, nbytes):
    a(f"""s_mov_b32 s{dst}, s{ptr}
    s_mov_b32 s{dst+1}, s{ptr+1}
    s_mov_b32 s{dst+2}, {nbytes}
    s_mov_b32 s{dst+3}, 0x00020000""")

def cheb_group(a, T, th0, dl, c2, n, cosdst, sindst):
    a(f"v_cos_f32 v{T}, v{th0}")
    a(f"v_sin_f32 v{T+1}, v{th0}")
    a(f"v_add_f32 v{th0}, v{th0}, v{dl}")
    a(f"v_cos_f32 v{T+2}, v{th0}")
    a(f"v_sin_f32 v{T+3}, v{th0}")
    for j in range(2, n):
        a(f"v_pk_fma_f32 v[{T+2*j}:{T+2*j+1}], v[{c2}:{c2+1}], v[{T+2*j-2}:{T+2*j-1}], v[{T+2*j-4}:{T+2*j-3}] op_sel_hi:[0,1,1] neg_lo:[0,0,1] neg_hi:[0,0,1]")
    for i in range(n//2):
        a(f"v_cvt_pk_bf16_f32 v{cosdst+i}, v{T+4*i}, v{T+4*i+2}")
        a(f"v_cvt_pk_bf16_f32 v{sindst+i}, v{T+4*i+1}, v{T+4*i+3}")

def unpack_fwd(a, dst, src):
    a(f"v_lshlrev_b32 v{dst}, 16, v{src}")
    a(f"v_and_b32 v{dst+1}, 0xffff0000, v{src}")
def unpack_rev(a, dst, src):
    a(f"v_and_b32 v{dst}, 0xffff0000, v{src}")
    a(f"v_lshlrev_b32 v{dst+1}, 16, v{src}")

def reduce_ag(a, r, t):
    a(f"v_add_f32 v{r}, v{r}, v{r} row_ror:8 row_mask:0xf bank_mask:0xf")
def reduce_hi(a, regs, tmps):
    for r, t in zip(regs, tmps): a(f"v_mov_b32 v{t}, v{r}")
    for r, t in zip(regs, tmps): a(f"v_permlane16_swap_b32 v{r}, v{t}")
    for r, t in zip(regs, tmps): a(f"v_add_f32 v{r}, v{r}, v{t}")
    for r, t in zip(regs, tmps): a(f"v_mov_b32 v{t}, v{r}")
    for r, t in zip(regs, tmps): a(f"v_permlane32_swap_b32 v{r}, v{t}")
    for r, t in zip(regs, tmps): a(f"v_add_f32 v{r}, v{r}, v{t}")

def phase1(a, L, stat=True):
    SX, SW, SWS = 12, 16, 20
    sS2, sQ, sP, sH, sWv = 24, 25, 26, 27, 28
    srd(a, SX, 4, XBYTES); srd(a, SW, 6, 1152); srd(a, SWS, 8, 0x400000)
    a(f"""s_lshr_b32 s29, s2, 3
    s_and_b32 s30, s2, 7
    s_lshl_b32 s30, s30, 3
    s_lshr_b32 s31, s29, 2
    s_add_u32 s{sS2}, s30, s31
    s_and_b32 s{sQ}, s29, 3
    s_and_b32 s{sP}, s{sQ}, 1
    s_lshr_b32 s{sH}, s{sQ}, 1
    v_lshrrev_b32 v5, 6, v0
    v_readfirstlane_b32 s{sWv}, v5
    v_and_b32 v5, 63, v0""")
    vL, vP, vQ, vP2, vQ2 = 5, 1, 2, 3, 4
    X = lambda i, k: 8 + i*16 + k*4
    W = lambda i, k: 56 + i*16 + k*4
    vRR, vAG = 204, 205
    a(f"""v_and_b32 v{vRR}, 7, v{vL}
    v_lshrrev_b32 v{vAG}, 3, v{vL}
    s_lshl_b32 s29, s{sWv}, 9
    s_add_u32 s29, s29, s{sS2}
    v_lshlrev_b32 v206, 6, v{vRR}
    v_add_u32 v206, s29, v206""")
    vROW = 206
    a(f"""s_movk_i32 s29, 1152
    v_mul_lo_u32 v207, v{vROW}, s29
    v_lshlrev_b32 v208, 4, v{vAG}
    v_add_u32 v{vP}, v207, v208
    v_sub_u32 v{vQ}, v207, v208
    v_add_u32 v{vQ}, 304, v{vQ}
    v_cmp_gt_u32 vcc, 2, v{vAG}
    v_mov_b32 v209, 0x7ff00000
    v_cndmask_b32 v{vP2}, v209, v{vP}, vcc
    v_cndmask_b32 v{vQ2}, v209, v{vQ}, vcc""")
    for i in range(3):
        p_, q_ = (vP, vQ) if i < 2 else (vP2, vQ2)
        a(f"buffer_load_dwordx4 v[{X(i,0)}:{X(i,0)+3}], v{p_}, s[{SX}:{SX+3}], 0 offen offset:{128*i}")
        a(f"buffer_load_dwordx4 v[{X(i,1)}:{X(i,1)+3}], v{q_}, s[{SX}:{SX+3}], 0 offen offset:{832-128*i}")
        a(f"buffer_load_dwordx4 v[{X(i,2)}:{X(i,2)+3}], v{q_}, s[{SX}:{SX+3}], 0 offen offset:{256-128*i}")
        a(f"buffer_load_dwordx4 v[{X(i,3)}:{X(i,3)+3}], v{p_}, s[{SX}:{SX+3}], 0 offen offset:{576+128*i}")
    if stat: a(f"""s_cmp_eq_u32 s{sQ}, 3
    s_cbranch_scc0 {L}_now""")
    if stat: a(f"""v_sub_u32 v210, 304, v208
    v_cndmask_b32 v211, v209, v208, vcc
    v_cndmask_b32 v212, v209, v210, vcc""")
    for i in (range(3) if stat else []):
        p_, q_ = (208, 210) if i < 2 else (211, 212)
        a(f"buffer_load_dwordx4 v[{W(i,0)}:{W(i,0)+3}], v{p_}, s[{SW}:{SW+3}], 0 offen offset:{128*i}")
        a(f"buffer_load_dwordx4 v[{W(i,1)}:{W(i,1)+3}], v{q_}, s[{SW}:{SW+3}], 0 offen offset:{832-128*i}")
        a(f"buffer_load_dwordx4 v[{W(i,2)}:{W(i,2)+3}], v{q_}, s[{SW}:{SW+3}], 0 offen offset:{256-128*i}")
        a(f"buffer_load_dwordx4 v[{W(i,3)}:{W(i,3)+3}], v{p_}, s[{SW}:{SW+3}], 0 offen offset:{576+128*i}")
    a.label(f"{L}_now")
    stamp(a, 1)
    vN, vG = 213, 214
    a(f"""v_and_b32 v{vN}, 15, v{vL}
    v_lshrrev_b32 v{vG}, 4, v{vL}""")
    HB = [104, 140]
    BETA = [200, 202]
    T = 216
    vFE, vTH, vDL, vC2, vU, vUt, vST = 232, 233, 234, 236, 238, 239, 240
    a(f"""v_cvt_f32_u32 v{vU}, v{vG}
    v_mov_b32 v{vUt}, {fl(257/1152)}
    v_mov_b32 v241, {fl(8/1152)}
    v_fmac_f32 v{vUt}, v{vU}, v241
    v_mov_b32 v241, {fl(16/1152)}
    v_mov_b32 v242, {fl(1/1152)}
    v_fma_f32 v{vU}, v{vU}, v241, v242""")
    def hidden(tile, sblk):
        a(f"""s_lshl_b32 s29, s{sblk}, 5
        s_add_u32 s29, s29, s{sP}
        s_add_u32 s29, s29, 1
        v_lshlrev_b32 v{vFE}, 1, v{vN}
        v_add_u32 v{vFE}, s29, v{vFE}
        v_cvt_f32_u32 v{vFE}, v{vFE}
        v_mul_f32 v{vDL}, {fl(1/576)}, v{vFE}
        v_mul_f32 v{vTH}, {fl(1/1152)}, v{vFE}
        v_cos_f32 v{vC2}, v{vDL}
        v_cos_f32 v{BETA[tile]}, v{vTH}
        v_sin_f32 v{BETA[tile]+1}, v{vTH}
        v_mul_f32 v{vST}, {fl(64/1152)}, v{vFE}
        v_add_f32 v{vC2}, v{vC2}, v{vC2}
        v_mul_f32 v241, v{vFE}, v{vU}""")
        for st in range(4):
            a(f"v_mov_b32 v{vTH}, v241")
            cheb_group(a, T, vTH, vDL, vC2, 8, HB[tile] + 4*st, HB[tile] + 18 + 4*st)
            if st < 3: a(f"v_add_f32 v241, v241, v{vST}")
        a(f"v_mul_f32 v{vTH}, v{vFE}, v{vUt}")
        cheb_group(a, T, vTH, vDL, vC2, 4, HB[tile] + 16, HB[tile] + 34)
    sB0, sB1 = 32, 33
    a(f"""s_mul_i32 s{sB0}, s{sH}, 5
    s_add_u32 s{sB0}, s{sB0}, s{sWv}
    s_movk_i32 s{sB1}, 4""")
    hidden(0, sB0)
    a(f"""s_lshl_b32 s34, s{sH}, 2
    s_or_b32 s34, s34, s{sWv}
    s_cmp_eq_u32 s34, 0
    s_cbranch_scc0 {L}_no2""")
    hidden(1, sB1)
    a.label(f"{L}_no2")
    FB = 176
    a(f"""v_and_b32 v243, 1, v{vN}
    v_mul_u32_u24 v243, 0x8000, v243
    v_lshlrev_b32 v244, 16, v243
    v_or_b32 v243, v243, v244
    v_mov_b32 v244, 0x80008000
    v_lshlrev_b32 v245, 8, v{vG}
    v_add_u32 v245, s{sS2}, v245
    v_cvt_f32_u32 v245, v245
    v_mul_f32 v245, {fl(1/2048)}, v245""")
    for tt in range(2):
        cb, sb, nb = FB + tt*12, FB + tt*12 + 4, FB + tt*12 + 8
        a(f"""v_add_u32 v{vFE}, {16*tt}, v{vN}
        v_cvt_f32_u32 v{vFE}, v{vFE}
        v_mul_f32 v{vDL}, {fl(1/32)}, v{vFE}
        v_mul_f32 v{vTH}, v{vFE}, v245
        v_cos_f32 v{vC2}, v{vDL}
        s_nop 0
        v_add_f32 v{vC2}, v{vC2}, v{vC2}""")
        cheb_group(a, T, vTH, vDL, vC2, 4, cb, sb)
        a(f"""v_xor_b32 v{cb+2}, v{cb}, v243
        v_xor_b32 v{cb+3}, v{cb+1}, v243
        v_xor_b32 v{sb+2}, v{sb}, v243
        v_xor_b32 v{sb+3}, v{sb+1}, v243""")
        for i in range(4): a(f"v_xor_b32 v{nb+i}, v{sb+i}, v244")
    vWA, vWT = 246, 247
    a(f"""s_lshr_b32 s29, s{sWv}, 1
    s_mul_i32 s29, s29, 4608
    s_and_b32 s30, s{sWv}, 1
    s_lshl_b32 s30, s30, 3
    v_add_u32 v248, s30, v{vRR}
    v_lshrrev_b32 v249, 2, v{vAG}
    v_lshlrev_b32 v249, 10, v249
    v_and_b32 v250, 3, v{vAG}
    v_lshlrev_b32 v250, 8, v250
    v_add_u32 v249, v249, v250
    v_lshlrev_b32 v250, 4, v248
    v_add3_u32 v{vWA}, v249, v250, s29
    v_lshlrev_b32 v249, 8, v{vAG}
    v_lshlrev_b32 v250, 3, v248
    v_add3_u32 v{vWT}, v249, v250, s29""")
    stamp(a, 2)
    vSUM, vSQ, vDOT, vSW = 216, 217, 218, 219
    a(f"""v_mov_b32 v{vSUM}, 0
    v_mov_b32 v{vSQ}, 0
    v_mov_b32 v{vDOT}, 0
    v_mov_b32 v{vSW}, 0
    s_mov_b32 s35, 0x3f803f80""")
    if stat: a(f"""s_cmp_eq_u32 s{sQ}, 3
    s_cbranch_scc1 {L}_st3""")
    a("s_waitcnt vmcnt(0)")
    for r in range(8, 56):
        a(f"v_dot2_f32_bf16 v{vSUM}, v{r}, s35, v{vSUM}")
        a(f"v_dot2_f32_bf16 v{vSQ}, v{r}, v{r}, v{vSQ}")
    if stat:
      a(f"s_branch {L}_st")
      a.label(f"{L}_st3")
      a("s_waitcnt vmcnt(0)")
    for r in (range(8, 56) if stat else []):
        a(f"v_dot2_f32_bf16 v{vSUM}, v{r}, s35, v{vSUM}")
        a(f"v_dot2_f32_bf16 v{vSQ}, v{r}, v{r}, v{vSQ}")
        a(f"v_dot2_f32_bf16 v{vDOT}, v{r}, v{r+48}, v{vDOT}")
        a(f"v_dot2_f32_bf16 v{vSW}, v{r+48}, s35, v{vSW}")
    a.label(f"{L}_st")
    stamp(a, 3)
    regs = [vSUM, vSQ, vDOT, vSW]; tm = [220, 221, 222, 223]
    if not stat: regs = regs[:2]; tm = tm[:2]
    for r in regs: a(f"v_add_f32 v{r}, v{r}, v{r} row_ror:8 row_mask:0xf bank_mask:0xf")
    reduce_hi(a, regs, tm)
    vM, vRS = 224, 226
    a(f"""v_mul_f32 v{vM}, {fl(1/576)}, v{vSUM}
    v_mul_f32 v{vSQ}, {fl(1/576)}, v{vSQ}
    v_fma_f32 v{vSQ}, -v{vM}, v{vM}, v{vSQ}
    v_max_f32 v{vSQ}, 0, v{vSQ}
    v_add_f32 v{vSQ}, {fl(1e-5)}, v{vSQ}
    v_rsq_f32 v{vRS}, v{vSQ}
    s_cmp_eq_u32 s{sP}, 1
    s_cselect_b32 s29, 1.0, -1.0
    s_cselect_b32 s30, -4.0, 0
    v_mul_f32 v{vRS+1}, s29, v{vRS}
    v_mul_f32 v228, v{vM}, v{vRS}
    v_mul_f32 v228, s30, v228""")
    if stat: a(f"""s_cmp_eq_u32 s{sQ}, 3
    s_cbranch_scc0 {L}_nost
    v_fma_f32 v{vDOT}, -v{vM}, v{vSW}, v{vDOT}
    v_mul_f32 v{vDOT}, v{vDOT}, v{vRS}
    v_mov_b32 v220, v{vM}
    v_mov_b32 v221, v{vRS}
    v_mov_b32 v222, v{vDOT}
    v_mov_b32 v223, 0
    v_lshlrev_b32 v230, 4, v{vROW}
    v_add_u32 v230, {WS_STATS}, v230
    v_ashrrev_i32 v231, 31, v{vDOT}
    v_or_b32 v231, 0x80000000, v231
    v_xor_b32 v231, v231, v{vDOT}
    v_and_b32 v231, 0xfffff800, v231
    v_sub_u32 v225, 2047, v{vROW}
    v_or_b32 v231, v231, v225
    v_max_u32 v231, v231, v231 quad_perm:[1,0,3,2] row_mask:0xf bank_mask:0xf
    v_max_u32 v231, v231, v231 quad_perm:[2,3,0,1] row_mask:0xf bank_mask:0xf
    v_max_u32 v231, v231, v231 row_half_mirror row_mask:0xf bank_mask:0xf
    s_lshl_b32 s29, s{sS2}, 2
    s_add_u32 s29, s29, s{sWv}
    s_lshl_b32 s29, s29, 2
    s_add_u32 s29, s29, {WS_KEYS}
    v_mov_b32 v225, s29
    s_mov_b64 s[36:37], exec
    s_mov_b64 exec, 0xff
    buffer_store_dwordx4 v[220:223], v230, s[{SWS}:{SWS+3}], 0 offen
    s_mov_b64 exec, 1
    buffer_store_dword v231, v225, s[{SWS}:{SWS+3}], 0 offen
    s_mov_b64 exec, s[36:37]""")
    a.label(f"{L}_nost")
    stamp(a, 4)
    Pf, Qf, Rf, Uf = 56, 64, 72, 80
    CO, SO = 88, 92
    for i in range(3):
        for j in range(4):
            unpack_fwd(a, Pf + 2*j, X(i, 0) + j)
            unpack_rev(a, Qf + 2*j, X(i, 1) + 3 - j)
            unpack_rev(a, Rf + 2*j, X(i, 2) + 3 - j)
            unpack_fwd(a, Uf + 2*j, X(i, 3) + j)
        for j in range(4):
            p_, q_, r_, u_ = Pf+2*j, Qf+2*j, Rf+2*j, Uf+2*j
            t0, t1 = 96, 98
            a(f"v_pk_add_f32 v[{t0}:{t0+1}], v[{p_}:{p_+1}], v[{q_}:{q_+1}]")
            a(f"v_pk_add_f32 v[{p_}:{p_+1}], v[{p_}:{p_+1}], v[{q_}:{q_+1}] neg_lo:[0,1] neg_hi:[0,1]")
            a(f"v_pk_add_f32 v[{t1}:{t1+1}], v[{u_}:{u_+1}], v[{r_}:{r_+1}]")
            a(f"v_pk_add_f32 v[{u_}:{u_+1}], v[{u_}:{u_+1}], v[{r_}:{r_+1}] neg_lo:[0,1] neg_hi:[0,1]")
            a(f"v_pk_fma_f32 v[{t1}:{t1+1}], v[{t1}:{t1+1}], v[{vRS}:{vRS+1}], v[228:229] op_sel:[0,1,0] op_sel_hi:[1,1,0]")
            a(f"v_pk_mul_f32 v[{u_}:{u_+1}], v[{u_}:{u_+1}], v[{vRS}:{vRS+1}] op_sel:[0,1] op_sel_hi:[1,1]")
            a(f"v_pk_fma_f32 v[{t0}:{t0+1}], v[{t0}:{t0+1}], v[{vRS}:{vRS+1}], v[{t1}:{t1+1}] op_sel_hi:[1,0,1]")
            a(f"v_pk_fma_f32 v[{p_}:{p_+1}], v[{p_}:{p_+1}], v[{vRS}:{vRS+1}], v[{u_}:{u_+1}] op_sel_hi:[1,0,1]")
            a(f"v_cvt_pk_bf16_f32 v{CO+j}, v{t0}, v{t0+1}")
            a(f"v_cvt_pk_bf16_f32 v{SO+j}, v{p_}, v{p_+1}")
        if i < 2:
            a(f"ds_write_b128 v{vWA}, v[{CO}:{CO+3}] offset:{2048*i}")
            a(f"ds_write_b128 v{vWA}, v[{SO}:{SO+3}] offset:{2048*i+9216}")
        else:
            a(f"""s_mov_b64 s[36:37], exec
            s_mov_b64 exec, 0xffff
            ds_write_b64 v{vWT}, v[{CO}:{CO+1}] offset:4096
            ds_write_b64 v{vWT}, v[{CO+2}:{CO+3}] offset:{4096+128}
            ds_write_b64 v{vWT}, v[{SO}:{SO+1}] offset:{4096+9216}
            ds_write_b64 v{vWT}, v[{SO+2}:{SO+3}] offset:{4096+128+9216}
            s_mov_b64 exec, s[36:37]""")
    a("s_waitcnt lgkmcnt(0)")
    a("s_barrier")
    stamp(a, 5)
    AF = lambda f, rt, st: 8 + (f*2 + rt)*18 + st*4
    a(f"""v_lshlrev_b32 v1, 4, v{vL}
    v_lshlrev_b32 v2, 3, v{vL}""")
    for st in range(4):
        for f in range(2):
            for rt in range(2):
                a(f"ds_read_b128 v[{AF(f,rt,st)}:{AF(f,rt,st)+3}], v1 offset:{f*9216+rt*4608+st*1024}")
    for f in range(2):
        for rt in range(2):
            a(f"ds_read_b64 v[{AF(f,rt,4)}:{AF(f,rt,4)+1}], v2 offset:{f*9216+rt*4608+4096}")
    vVA = 3
    a(f"""s_mov_b32 s29, 73728
    v_mul_lo_u32 v{vVA}, v{vN}, s29
    v_lshlrev_b32 v4, 4, v{vG}
    s_mul_i32 s30, s{sS2}, 1152
    s_lshl_b32 s31, s{sP}, 6
    s_add_u32 s30, s30, s31
    v_add3_u32 v{vVA}, v{vVA}, v4, s30""")
    ACC = 80
    def tile(t, sblk, first):
        hb = HB[t]
        for st in range(5):
            if first:
                left = 16 + 4 - 4*(st+1) if st < 4 else 0
                a(f"s_waitcnt lgkmcnt({min(left,15)})")
            for f in range(2):
                for rt in range(2):
                    acc = ACC + f*8 + rt*4
                    c = "0" if st == 0 else f"v[{acc}:{acc+3}]"
                    if st < 4:
                        a(f"v_mfma_f32_16x16x32_bf16 v[{acc}:{acc+3}], v[{AF(f,rt,st)}:{AF(f,rt,st)+3}], v[{hb+18*f+4*st}:{hb+18*f+4*st+3}], {c}")
                    else:
                        a(f"v_mfma_f32_16x16x16_bf16 v[{acc}:{acc+3}], v[{AF(f,rt,4)}:{AF(f,rt,4)+1}], v[{hb+18*f+16}:{hb+18*f+17}], {c}")
        B = BETA[t]
        R0 = 96
        for rt in range(2):
            for j in range(2):
                c_ = ACC + rt*4 + 2*j; s_ = ACC + 8 + rt*4 + 2*j; o = R0 + rt*4 + 2*j
                a(f"v_pk_mul_f32 v[{o}:{o+1}], v[{c_}:{c_+1}], v[{B}:{B+1}] op_sel_hi:[1,0]")
                a(f"v_pk_fma_f32 v[{o}:{o+1}], v[{s_}:{s_+1}], v[{B}:{B+1}], v[{o}:{o+1}] op_sel:[0,1,0] op_sel_hi:[1,1,1]")
                a(f"v_pk_mul_f32 v[{s_}:{s_+1}], v[{s_}:{s_+1}], v[{B}:{B+1}] op_sel_hi:[1,0]")
                a(f"v_pk_fma_f32 v[{s_}:{s_+1}], v[{c_}:{c_+1}], v[{B}:{B+1}], v[{s_}:{s_+1}] op_sel:[0,1,0] op_sel_hi:[1,1,1] neg_lo:[1,0,0] neg_hi:[1,0,0]")
        A2C, A2S = 104 - 24, 104 - 20
        A2C, A2S = 80, 84
        for i in range(4): a(f"v_cvt_pk_bf16_f32 v{A2C+i}, v{R0+2*i}, v{R0+2*i+1}")
        for i in range(4): a(f"v_cvt_pk_bf16_f32 v{A2S+i}, v{ACC+8+2*i}, v{ACC+8+2*i+1}")
        O = 88
        for tt in range(2):
            cb, sb, nb = FB + tt*12, FB + tt*12 + 4, FB + tt*12 + 8
            o = O + tt*8
            a(f"v_mfma_f32_16x16x32_bf16 v[{o}:{o+3}], v[{A2C}:{A2C+3}], v[{cb}:{cb+3}], 0")
            a(f"v_mfma_f32_16x16x32_bf16 v[{o+4}:{o+7}], v[{A2C}:{A2C+3}], v[{sb}:{sb+3}], 0")
        for tt in range(2):
            cb, sb, nb = FB + tt*12, FB + tt*12 + 4, FB + tt*12 + 8
            o = O + tt*8
            a(f"v_mfma_f32_16x16x32_bf16 v[{o}:{o+3}], v[{A2S}:{A2S+3}], v[{nb}:{nb+3}], v[{o}:{o+3}]")
            a(f"v_mfma_f32_16x16x32_bf16 v[{o+4}:{o+7}], v[{A2S}:{A2S+3}], v[{cb}:{cb+3}], v[{o+4}:{o+7}]")
        a(f"s_lshl_b32 s29, s{sblk}, 7")
        for tt in range(2):
            o = O + tt*8; pk = 204 + tt*4
            for i in range(4): a(f"v_cvt_pk_bf16_f32 v{pk+i}, v{o+2*i}, v{o+2*i+1}")
            a(f"s_add_u32 s30, s29, {tt*16*73728}")
            a(f"buffer_store_dwordx4 v[{pk}:{pk+3}], v{vVA}, s[{SWS}:{SWS+3}], s30 offen")
    tile(0, sB0, True)
    stamp(a, 6)
    a(f"""s_cmp_eq_u32 s34, 0
    s_cbranch_scc0 {L}_done""")
    tile(1, sB1, False)
    a.label(f"{L}_done")
```

```python
from asmlib import *
from k1 import *
OUTBYTES = XBYTES

def phase2(a, L, sU=2, moe=False):
    SX, SO, SWS = 12, 16, 20
    sT1, sB, sWv = 24, 25, 26
    if moe: a("""s_mov_b32 s46, 0x249000
    s_load_dwordx2 s[44:45], s[8:9], s46""")
    srd(a, SX, 4, XBYTES); srd(a, SO, 10, OUTBYTES); srd(a, SWS, 8, 0x400000)
    a(f"""s_and_b32 s29, s{sU}, 31
    s_lshr_b32 s{sB}, s{sU}, 5
    s_and_b32 s30, s29, 7
    s_lshr_b32 s31, s29, 3
    s_lshl_b32 s30, s30, 1
    s_lshr_b32 s32, s31, 1
    s_add_u32 s30, s30, s32
    s_sub_u32 s32, 32, s30
    s_cmp_eq_u32 s30, 0
    s_cselect_b32 s32, 16, s32
    s_and_b32 s31, s31, 1
    s_cmp_eq_u32 s31, 1
    s_cselect_b32 s{sT1}, s32, s30
    v_lshrrev_b32 v5, 6, v0
    v_readfirstlane_b32 s{sWv}, v5
    v_and_b32 v5, 63, v0""")
    vL = 5
    a(f"""v_lshrrev_b32 v1, 3, v0
    v_and_b32 v2, 7, v0
    s_movk_i32 s29, 1152
    v_mul_lo_u32 v3, v1, s29
    v_lshlrev_b32 v4, 4, v2
    s_mul_i32 s30, s{sT1}, 73728
    s_lshl_b32 s31, s{sB}, 7
    s_add_u32 s30, s30, s31
    v_add3_u32 v3, v3, v4, s30
    buffer_load_dwordx4 v[8:11], v3, s[{SWS}:{SWS+3}], 0 offen
    s_mov_b32 s31, {32*1152}
    buffer_load_dwordx4 v[12:15], v3, s[{SWS}:{SWS+3}], s31 offen""")
    a(f"""v_lshrrev_b32 v4, 2, v2
    v_mul_u32_u24 v4, 4224, v4
    v_and_b32 v6, 3, v2
    v_lshlrev_b32 v6, 3, v6
    v_lshlrev_b32 v7, 5, v1
    v_add3_u32 v4, v4, v6, v7""")
    vN, vG, vT, vTM = 16, 17, 18, 19
    a(f"""v_and_b32 v{vN}, 15, v{vL}
    v_lshrrev_b32 v{vG}, 4, v{vL}
    s_lshl_b32 s29, s{sWv}, 4
    v_add_u32 v{vT}, s29, v{vN}
    v_lshlrev_b32 v{vT}, 5, v{vT}
    v_add_u32 v{vT}, s{sT1}, v{vT}
    v_sub_u32 v{vTM}, 2048, v{vT}
    v_and_b32 v{vTM}, 2047, v{vTM}
    s_movk_i32 s29, 1152
    v_mul_lo_u32 v20, v{vT}, s29
    v_mul_lo_u32 v21, v{vTM}, s29
    v_lshlrev_b32 v22, 4, v{vG}
    s_lshl_b32 s30, s{sB}, 6
    s_add_u32 s31, s30, 2
    v_add3_u32 v20, v20, v22, s31
    s_sub_u32 s31, 1136, s30
    v_sub_u32 v21, v21, v22
    v_add_u32 v21, s31, v21
    buffer_load_dwordx4 v[24:27], v20, s[{SX}:{SX+3}], 0 offen
    buffer_load_dwordx4 v[28:31], v21, s[{SX}:{SX+3}], 0 offen
    v_lshlrev_b32 v22, 4, v{vT}
    v_lshlrev_b32 v23, 4, v{vTM}
    s_mov_b32 s31, {WS_STATS}
    buffer_load_dwordx2 v[32:33], v22, s[{SWS}:{SWS+3}], s31 offen
    buffer_load_dwordx2 v[34:35], v23, s[{SWS}:{SWS+3}], s31 offen""")
    a(f"""v_subrev_u32 v36, 2, v20
    s_cmp_eq_u32 s{sB}, 0
    s_cbranch_scc0 {L}_nc0
    buffer_load_ushort v37, v36, s[{SX}:{SX+3}], 0 offen""")
    a.label(f"{L}_nc0")
    stamp(a, 1)
    T, vFE, vTH, vDL, vC2 = 40, 56, 57, 58, 60
    GC, GS = 64, 72
    a(f"""s_lshl_b32 s29, s{sWv}, 4
    v_add_u32 v{vFE}, s29, v{vN}
    v_cvt_f32_u32 v{vFE}, v{vFE}
    v_mul_f32 v{vDL}, {fl(1/64)}, v{vFE}
    v_cos_f32 v{vC2}, v{vDL}
    v_cvt_f32_u32 v62, v{vG}
    v_mul_f32 v62, 4.0, v62
    v_mul_f32 v{vTH}, v62, v{vDL}
    v_add_f32 v{vC2}, v{vC2}, v{vC2}
    v_and_b32 v63, 1, v{vN}
    v_mul_u32_u24 v63, 0x8000, v63
    v_lshlrev_b32 v61, 16, v63
    v_or_b32 v63, v63, v61
    v_mov_b32 v59, 0x80008000""")
    cheb_group(a, T, vTH, vDL, vC2, 4, GC, GS)
    a(f"""v_add_f32 v62, {fl(16.0)}, v62
    v_mul_f32 v{vTH}, v62, v{vDL}""")
    cheb_group(a, T, vTH, vDL, vC2, 4, GC + 2, GS + 2)
    for i in range(4):
        a(f"v_xor_b32 v{GS+i}, v{GS+i}, v59")
    for i in range(4):
        a(f"v_xor_b32 v{GC+4+i}, v{GC+i}, v63")
        a(f"v_xor_b32 v{GS+4+i}, v{GS+i}, v63")
    stamp(a, 2)
    if moe:
        a(f"""s_waitcnt lgkmcnt(0)
        s_and_b32 s29, s44, 31
        s_sub_u32 s30, 2048, s44
        s_and_b32 s30, s30, 31
        s_cmp_eq_u32 s29, s{sT1}
        s_cbranch_scc1 {L}_own
        s_cmp_eq_u32 s30, s{sT1}
        s_cbranch_scc1 {L}_own""")
        p2tail(a, L + "n", False, locals())
        a("s_endpgm" if not P2_FALL else f"s_branch {L}_end")
        a.label(f"{L}_own")
        p2tail(a, L + "o", True, locals())
        a.label(f"{L}_end")
    else:
        p2tail(a, L, False, locals())

P2_FALL = True
def p2tail(a, L, own, E):
    SX, SO, SWS, sT1, sB, sWv = E["SX"], E["SO"], E["SWS"], E["sT1"], E["sB"], E["sWv"]
    vL, vN, vG, vT, vTM, GC, GS = E["vL"], E["vN"], E["vG"], E["vT"], E["vTM"], E["GC"], E["GS"]
    NO = 0
    YB = 8448
    if own:
        NO = 11
        SP = 48
        a(f"""s_add_u32 s48, s8, {WS_PART}
        s_addc_u32 s49, s9, 0
        s_mov_b32 s50, {144*2304}
        s_mov_b32 s51, 0x00020000
        v_lshrrev_b32 v128, 3, v0
        v_mul_u32_u24 v128, 2304, v128
        v_and_b32 v129, 7, v0
        v_lshlrev_b32 v129, 4, v129
        v_add_u32 v128, v128, v129
        s_lshl_b32 s29, s{sB}, 7
        s_sub_u32 s30, 2176, s29
        s_add_u32 s29, s29, 4""")
        for k in range(5):
            a(f"buffer_load_dwordx4 v[{132+4*k}:{135+4*k}], v128, s[48:51], s29 offen")
            a(f"buffer_load_dwordx4 v[{152+4*k}:{155+4*k}], v128, s[48:51], s30 offen")
            if k < 4: a(f"""s_add_u32 s29, s29, {32*2304}
            s_add_u32 s30, s30, {32*2304}""")
        a(f"""v_mov_b32 v172, 0
        s_mul_i32 s29, s{sWv}, {36*2304}
        v_mul_u32_u24 v130, 2304, v{vL}
        v_cmp_gt_u32 vcc, 36, v{vL}
        s_and_saveexec_b64 s[52:53], vcc
        buffer_load_dword v172, v130, s[48:51], s29 offen
        s_mov_b64 exec, s[52:53]
        v_lshlrev_b32 v131, 2, v0
        v_mov_b32 v173, 0
        v_cmp_gt_u32 vcc, 80, v0
        s_and_saveexec_b64 s[52:53], vcc
        ds_write_b32 v131, v173 offset:{YB}
        s_mov_b64 exec, s[52:53]""")
    a(f"""s_cmp_eq_u32 s{sB}, 0
    s_cbranch_scc1 {L}_w5
    s_waitcnt vmcnt({4+NO})
    s_branch {L}_w
    """)
    a.label(f"{L}_w5")
    a(f"s_waitcnt vmcnt({5+NO})")
    a.label(f"{L}_w")
    a(f"""ds_write_b64 v4, v[8:9]
    ds_write_b64 v4, v[10:11] offset:2048
    ds_write_b64 v4, v[12:13] offset:1024
    ds_write_b64 v4, v[14:15] offset:{1024+2048}
    s_waitcnt lgkmcnt(0)
    s_barrier
    v_lshlrev_b32 v4, 3, v{vL}""")
    stamp(a, 3)
    AF = lambda p, ri, st: 80 + ((p*2 + ri)*2 + st)*4
    for st in range(2):
        for p in range(2):
            for ri in range(2):
                base = p*4224 + ri*2048 + st*1024
                r = AF(p, ri, st)
                a(f"ds_read_b64_tr_b16 v[{r}:{r+1}], v4 offset:{base}")
                a(f"ds_read_b64_tr_b16 v[{r+2}:{r+3}], v4 offset:{base+512}")
    ACC = 112
    for st in range(2):
        a(f"s_waitcnt lgkmcnt({8 if st == 0 else 0})")
        for p in range(2):
            acc = ACC + 4*p
            c = "0" if st == 0 else f"v[{acc}:{acc+3}]"
            a(f"v_mfma_f32_16x16x32_bf16 v[{acc}:{acc+3}], v[{AF(p,0,st)}:{AF(p,0,st)+3}], v[{GC+4*st}:{GC+4*st+3}], {c}")
        for p in range(2):
            acc = ACC + 4*p
            a(f"v_mfma_f32_16x16x32_bf16 v[{acc}:{acc+3}], v[{AF(p,1,st)}:{AF(p,1,st)+3}], v[{GS+4*st}:{GS+4*st+3}], v[{acc}:{acc+3}]")
    stamp(a, 4)
    a("s_waitcnt vmcnt(0)")
    stamp(a, 5)
    if own:
        for k in range(1, 5):
            for h in range(2):
                a(f"v_pk_add_f32 v[{132+2*h}:{133+2*h}], v[{132+2*h}:{133+2*h}], v[{132+4*k+2*h}:{133+4*k+2*h}]")
                a(f"v_pk_add_f32 v[{152+2*h}:{153+2*h}], v[{152+2*h}:{153+2*h}], v[{152+4*k+2*h}:{153+4*k+2*h}]")
        R8 = [132, 133, 134, 135, 152, 153, 154, 155]
        for r in R8: a(f"v_add_f32 v{r}, v{r}, v{r} row_ror:8 row_mask:0xf bank_mask:0xf")
        for m in ("quad_perm:[1,0,3,2]", "quad_perm:[2,3,0,1]", "row_half_mirror", "row_mirror"):
            a(f"v_add_f32 v172, v172, v172 {m} row_mask:0xf bank_mask:0xf")
        reduce_hi(a, R8 + [172], list(range(136, 145)))
        a(f"""v_lshlrev_b32 v131, 4, v{vL}
        s_mov_b64 s[52:53], exec
        s_mov_b64 exec, 0xff""")
        for j in range(4):
            a(f"ds_add_f32 v131, v{132+j} offset:{YB+4*j}")
            a(f"ds_add_f32 v131, v{152+j} offset:{YB+128+4*j}")
        a(f"""s_mov_b64 exec, 1
        ds_add_f32 v131, v172 offset:{YB+256}
        s_mov_b64 exec, s[52:53]
        v_lshlrev_b32 v131, 5, v{vG}
        v_sub_u32 v130, 96, v131
        v_mov_b32 v129, 0
        v_mov_b32 v173, s45
        v_mul_f32 v173, {fl(-1.4426950408889634)}, v173
        v_exp_f32 v173, v173
        v_add_f32 v173, 1.0, v173
        v_rcp_f32 v173, v173
        v_cmp_eq_u32 vcc, s44, v{vT}
        v_cndmask_b32 v174, 0, v173, vcc
        v_cmp_eq_u32 vcc, s44, v{vTM}
        v_cndmask_b32 v175, 0, v173, vcc
        s_waitcnt lgkmcnt(0)
        s_barrier
        ds_read_b128 v[132:135], v131 offset:{YB}
        ds_read_b128 v[136:139], v131 offset:{YB+16}
        ds_read_b128 v[152:155], v130 offset:{YB+128}
        ds_read_b128 v[156:159], v130 offset:{YB+128+16}
        ds_read_b32 v172, v129 offset:{YB+256}
        s_waitcnt lgkmcnt(0)""")
    a(f"""v_mul_f32 v32, v32, v33
    v_add_f32 v33, 1.0, v33
    v_mul_f32 v34, v34, v35
    v_add_f32 v35, 1.0, v35""")
    for p in range(2):
        for h in range(2):
            s_ = ACC + 4*p + 2*h
            a(f"v_pk_add_f32 v[{40+4*p+2*h}:{41+4*p+2*h}], v[{s_}:{s_+1}], v[32:33] op_sel_hi:[1,0] neg_lo:[0,1] neg_hi:[0,1]")
            a(f"v_pk_add_f32 v[{48+4*p+2*h}:{49+4*p+2*h}], v[{s_}:{s_+1}], v[34:35] op_sel_hi:[1,0] neg_lo:[0,1] neg_hi:[0,1]")
    if own:
        for k in range(8):
            a(f"v_fmac_f32 v{40+(k&1)*4+(k>>1)}, v{132+k}, v174")
            kk = 7 - k
            a(f"v_fmac_f32 v{48+(kk&1)*4+(kk>>1)}, v{152+k}, v175")
    for i in range(4):
        a(f"v_lshlrev_b32 v56, 16, v{24+i}")
        a(f"v_and_b32 v57, 0xffff0000, v{24+i}")
        a(f"v_fma_f32 v56, v56, v33, v{40+i}")
        a(f"v_fma_f32 v57, v57, v33, v{44+i}")
        a(f"v_cvt_pk_bf16_f32 v{64+i}, v56, v57")
    for i in range(4):
        a(f"v_lshlrev_b32 v58, 16, v{28+i}")
        a(f"v_and_b32 v59, 0xffff0000, v{28+i}")
        a(f"v_fma_f32 v58, v58, v35, v{48+4+3-i}")
        a(f"v_fma_f32 v59, v59, v35, v{48+3-i}")
        a(f"v_cvt_pk_bf16_f32 v{68+i}, v58, v59")
    a(f"""buffer_store_dwordx4 v[64:67], v20, s[{SO}:{SO+3}], 0 offen
    buffer_store_dwordx4 v[68:71], v21, s[{SO}:{SO+3}], 0 offen""")
    a(f"""s_cmp_eq_u32 s{sB}, 0
    s_cbranch_scc0 {L}_done
    v_lshlrev_b32 v37, 16, v37
    v_fma_f32 v37, v37, v33, -v32
    {"v_fmac_f32 v37, v172, v174" if own else ""}
    v_cvt_pk_bf16_f32 v37, v37, v37
    s_mov_b64 exec, 0xffff
    buffer_store_short v37, v36, s[{SO}:{SO+3}], 0 offen""")
    a.label(f"{L}_done")
```

```python
from asmlib import *
from k1 import *
from k2 import *
WS_SEL = 0x249000
XB = 2048*1152

def dpp_red(a, op, regs):
    for m in ("quad_perm:[1,0,3,2]", "quad_perm:[2,3,0,1]", "row_half_mirror", "row_mirror"):
        for r in regs: a(f"{op} v{r}, v{r}, v{r} {m} row_mask:0xf bank_mask:0xf")
def hi_red(a, op, regs, tmps):
    for r, t in zip(regs, tmps): a(f"v_mov_b32 v{t}, v{r}")
    for r, t in zip(regs, tmps): a(f"v_permlane16_swap_b32 v{r}, v{t}")
    for r, t in zip(regs, tmps): a(f"{op} v{r}, v{r}, v{t}")
    for r, t in zip(regs, tmps): a(f"v_mov_b32 v{t}, v{r}")
    for r, t in zip(regs, tmps): a(f"v_permlane32_swap_b32 v{r}, v{t}")
    for r, t in zip(regs, tmps): a(f"{op} v{r}, v{r}, v{t}")

def statwg(a, L, sJ=3):
    SX, SW, SWS, SD = 12, 16, 20, 24
    srd(a, SX, 4, XB); srd(a, SW, 6, 1152)
    a(f"""v_lshrrev_b32 v1, 3, v0
    s_lshl_b32 s29, s{sJ}, 5
    v_add_u32 v1, s29, v1
    v_and_b32 v2, 7, v0
    v_lshlrev_b32 v2, 4, v2
    s_movk_i32 s30, 1152
    v_mul_lo_u32 v3, v1, s30
    v_add_u32 v3, v3, v2""")
    X = lambda i: 8 + 4*i
    W = lambda i: 44 + 4*i
    for i in range(9):
        a(f"buffer_load_dwordx4 v[{X(i)}:{X(i)+3}], v3, s[{SX}:{SX+3}], 0 offen offset:{128*i}")
        a(f"buffer_load_dwordx4 v[{W(i)}:{W(i)+3}], v2, s[{SW}:{SW+3}], 0 offen offset:{128*i}")
    stamp(a, 1)
    srd(a, SWS, 8, 0x400000); srd(a, SD, 42, 256)
    vS, vQ, vD, vW = 80, 81, 82, 83
    a(f"""v_mov_b32 v{vS}, 0
    v_mov_b32 v{vQ}, 0
    v_mov_b32 v{vD}, 0
    v_mov_b32 v{vW}, 0
    s_mov_b32 s35, 0x3f803f80
    v_lshrrev_b32 v4, 6, v0
    v_lshlrev_b32 v4, 2, v4""")
    for i in range(9):
        a(f"s_waitcnt vmcnt({16-2*i})")
        for j in range(4):
            a(f"v_dot2_f32_bf16 v{vS}, v{X(i)+j}, s35, v{vS}")
            a(f"v_dot2_f32_bf16 v{vQ}, v{X(i)+j}, v{X(i)+j}, v{vQ}")
            a(f"v_dot2_f32_bf16 v{vD}, v{X(i)+j}, v{W(i)+j}, v{vD}")
            a(f"v_dot2_f32_bf16 v{vW}, v{W(i)+j}, s35, v{vW}")
    stamp(a, 2)
    for m in ("quad_perm:[1,0,3,2]", "quad_perm:[2,3,0,1]", "row_half_mirror"):
        for r in (vS, vQ, vD, vW): a(f"v_add_f32 v{r}, v{r}, v{r} {m} row_mask:0xf bank_mask:0xf")
    a(f"""v_mul_f32 v84, {fl(1/576)}, v{vS}
    v_mul_f32 v{vQ}, {fl(1/576)}, v{vQ}
    v_fma_f32 v{vQ}, -v84, v84, v{vQ}
    v_max_f32 v{vQ}, 0, v{vQ}
    v_add_f32 v{vQ}, {fl(1e-5)}, v{vQ}
    v_rsq_f32 v85, v{vQ}
    v_fma_f32 v86, -v84, v{vW}, v{vD}
    v_mul_f32 v86, v86, v85
    v_mov_b32 v87, 0
    v_ashrrev_i32 v88, 31, v86
    v_or_b32 v88, 0x80000000, v88
    v_xor_b32 v88, v88, v86
    v_and_b32 v88, 0xfffff800, v88
    v_sub_u32 v89, 2047, v1
    v_or_b32 v88, v88, v89
    v_max_u32 v88, v88, v88 row_ror:8 row_mask:0xf bank_mask:0xf""")
    hi_red(a, "v_max_u32", [88], [89])
    a(f"""ds_write_b32 v4, v88
    v_lshlrev_b32 v90, 4, v1
    v_add_u32 v90, {WS_STATS}, v90
    v_and_b32 v91, 7, v0
    v_cmp_eq_u32 vcc, 0, v91
    s_waitcnt lgkmcnt(0)
    s_barrier
    v_mov_b32 v92, 0
    ds_read_b128 v[92:95], v92
    s_and_saveexec_b64 s[36:37], vcc
    buffer_store_dwordx4 v[84:87], v90, s[{SWS}:{SWS+3}], 0 offen
    s_mov_b64 exec, s[36:37]
    s_lshl_b32 s29, s{sJ}, 2
    v_mov_b32 v96, s29
    s_waitcnt lgkmcnt(0)
    v_max_u32 v92, v92, v93
    v_max_u32 v94, v94, v95
    v_max_u32 v92, v92, v94
    v_cmp_eq_u32 vcc, 0, v0
    s_and_saveexec_b64 s[36:37], vcc
    s_cbranch_execz {L}_nk
    buffer_store_dword v92, v96, s[{SD}:{SD+3}], 0 offen sc1""")
    a.label(f"{L}_nk")
    a("s_mov_b64 exec, s[36:37]")

def prefetch(a, sPJ, sWv, vL, dummy):
    a(f"""s_and_b32 s29, s{sPJ}, 7
    s_lshr_b32 s30, s{sPJ}, 3
    s_cmp_eq_u32 s{sWv}, 1
    s_cselect_b32 s44, s38, s36
    s_cselect_b32 s45, s39, s37
    s_cmp_eq_u32 s{sWv}, 2
    s_cselect_b32 s44, s40, s44
    s_cselect_b32 s45, s41, s45
    s_movk_i32 s31, 9216
    s_movk_i32 s32, 1152
    s_cselect_b32 s31, 1152, s31
    s_cselect_b32 s32, {576*1152}, s32
    s_mov_b32 s46, {576*9216}
    s_mov_b32 s47, 0x00020000
    s_mul_i32 s29, s29, s32
    s_mul_i32 s30, s30, 24
    s_mul_i32 s30, s30, s31
    s_add_u32 s29, s29, s30
    v_lshrrev_b32 v1, 3, v{vL}
    v_mul_lo_u32 v1, v1, s31
    v_and_b32 v2, 7, v{vL}
    v_lshl_add_u32 v1, v2, 4, v1
    s_lshl_b32 s31, s31, 3""")
    for g in range(3):
        for seg in range(9):
            a(f"buffer_load_dwordx4 v[{dummy}:{dummy+3}], v1, s[44:47], s29 offen offset:{128*seg}{PFMOD}")
        if g < 2: a("s_add_u32 s29, s29, s31")
PFMOD = ""

def moe2(a, L, sU, sPJ, late_down=True, pf=True):
    SX, SD, SWS, SDB = 12, 16, 20, 48
    sWv, sIdx = 26, 27
    a(f"""v_lshrrev_b32 v5, 6, v0
    v_readfirstlane_b32 s{sWv}, v5
    v_and_b32 v5, 63, v0
    s_cmp_eq_u32 s{sWv}, 3
    s_cbranch_scc1 {L}_help""")
    vL, vN, vG = 5, 6, 7
    if pf: prefetch(a, sPJ, sWv, vL, 216)
    stamp(a, 1)
    srd(a, SD, 40, 4608*1152); srd(a, SWS, 8, 0x400000)
    a(f"""v_and_b32 v{vN}, 15, v{vL}
    v_lshrrev_b32 v{vG}, 4, v{vL}
    v_and_b32 v1, 3, v{vN}
    v_lshrrev_b32 v2, 2, v{vN}
    v_and_b32 v2, 1, v2
    v_lshrrev_b32 v3, 3, v{vN}
    v_lshlrev_b32 v4, 2, v2
    v_add_u32 v4, v4, v{vG}
    s_mul_i32 s29, s{sWv}, 192
    v_add_u32 v4, s29, v4
    s_movk_i32 s30, 9216
    v_mul_lo_u32 v8, v4, s30
    v_lshlrev_b32 v9, 4, v1
    s_lshl_b32 s31, s{sU}, 6
    v_add3_u32 v8, v8, v9, s31
    v_cmp_eq_u32 vcc, 1, v3
    v_mov_b32 v10, s36
    v_mov_b32 v11, s37
    v_mov_b32 v12, s38
    v_mov_b32 v13, s39
    v_cndmask_b32 v10, v10, v12, vcc
    v_cndmask_b32 v11, v11, v13, vcc
    v_add_co_u32 v10, vcc, v10, v8
    v_addc_co_u32 v11, vcc, 0, v11, vcc
    s_mov_b32 s29, 73728""")
    WG = 32
    for i in range(24):
        a(f"global_load_dwordx4 v[{WG+4*i}:{WG+4*i+3}], v[10:11], off")
        if i < 23:
            a(f"""v_add_co_u32 v10, vcc, s29, v10
            v_addc_co_u32 v11, vcc, 0, v11, vcc""")
    WD = 128
    a(f"""v_lshrrev_b32 v1, 3, v{vN}
    v_and_b32 v2, 7, v{vN}
    v_lshlrev_b32 v1, 2, v1
    v_add_u32 v1, v1, v{vG}
    s_lshl_b32 s29, s{sU}, 5
    v_add_u32 v1, s29, v1
    s_movk_i32 s30, 1152
    v_mul_lo_u32 v1, v1, s30
    v_lshlrev_b32 v2, 4, v2
    s_mul_i32 s31, s{sWv}, 384
    v_add3_u32 v15, v1, v2, s31""")
    def down_loads():
        for k in range(3):
            for fg in range(4):
                a(f"s_mov_b32 s29, {fg*8*1152}")
                a(f"buffer_load_dwordx4 v[{WD+16*k+4*fg}:{WD+16*k+4*fg+3}], v15, s[{SD}:{SD+3}], s29 offen offset:{128*k}")
    if not late_down: down_loads()
    MK = 22
    a(f"""v_and_b32 v1, 7, v{vN}
    v_and_b32 v2, 1, v1
    v_lshrrev_b32 v1, 1, v1
    v_mov_b32 v3, 0xffff
    v_mov_b32 v4, 0xffff0000
    v_cmp_eq_u32 vcc, 1, v2
    v_cndmask_b32 v3, v3, v4, vcc""")
    for i in range(4):
        a(f"""v_cmp_eq_u32 vcc, {i}, v1
        v_cndmask_b32 v{MK+i}, 0, v3, vcc""")
    a(f"""v_lshrrev_b32 v1, 3, v{vN}
    v_lshlrev_b32 v1, 2, v1
    v_add_u32 v1, v1, v{vG}
    v_lshlrev_b32 v1, 2, v1
    s_mul_i32 s29, s{sWv}, 768
    v_add_u32 v26, s29, v1
    s_lshl_b32 s29, s{sWv}, 7
    s_add_u32 s29, s29, 6144
    v_add_u32 v27, s29, v1""")
    stamp(a, 2)
    a("s_barrier")
    stamp(a, 3)
    XS = 176
    for i in range(24): a(f"ds_read_b32 v{XS+i}, v26 offset:{32*i}")
    if late_down: down_loads()
    ACC = [208, 212]
    AB = [200, 204]
    a("s_waitcnt lgkmcnt(0)")
    for i in range(24):
        ab = AB[i & 1]; acc = ACC[i & 1]
        if i % 4 == 0: a(f"s_waitcnt vmcnt({12 + 24 - (i+4)})")
        for j in range(4): a(f"v_and_b32 v{ab+j}, v{XS+i}, v{MK+j}")
        c = "0" if i < 2 else f"v[{acc}:{acc+3}]"
        a(f"v_mfma_f32_16x16x32_bf16 v[{acc}:{acc+3}], v[{ab}:{ab+3}], v[{WG+4*i}:{WG+4*i+3}], {c}")
    a(f"""v_pk_add_f32 v[208:209], v[208:209], v[212:213]
    v_pk_add_f32 v[210:211], v[210:211], v[214:215]""")
    stamp(a, 4)
    a(f"""v_lshrrev_b32 v1, 1, v{vG}
    v_lshrrev_b32 v2, 2, v{vN}
    v_and_b32 v2, 1, v2
    v_cmp_eq_u32 vcc, v1, v2
    v_lshlrev_b32 v1, 8, v1
    v_lshrrev_b32 v3, 3, v{vN}
    v_lshlrev_b32 v3, 7, v3
    v_and_b32 v4, 3, v{vN}
    v_lshlrev_b32 v4, 5, v4
    v_add3_u32 v1, v1, v3, v4
    v_and_b32 v3, 1, v{vG}
    v_lshlrev_b32 v3, 4, v3
    s_lshl_b32 s29, s{sWv}, 9
    v_add3_u32 v1, v1, v3, s29
    s_and_saveexec_b64 s[30:31], vcc
    ds_write_b128 v1, v[208:211] offset:4096
    s_mov_b64 exec, s[30:31]
    v_and_b32 v1, 31, v{vL}
    v_lshrrev_b32 v2, 5, v{vL}
    v_lshlrev_b32 v1, 2, v1
    v_lshlrev_b32 v2, 7, v2
    v_add_u32 v1, v1, v2
    s_waitcnt lgkmcnt(0)
    s_barrier""")
    H = 176
    for k in range(6): a(f"ds_read_b32 v{H+k}, v1 offset:{4096+256*k}")
    a("s_waitcnt lgkmcnt(0)")
    a(f"""v_add_f32 v{H}, v{H}, v{H+1}
    v_add_f32 v{H+2}, v{H+2}, v{H+3}
    v_add_f32 v{H+4}, v{H+4}, v{H+5}
    v_add_f32 v{H}, v{H}, v{H+2}
    v_add_f32 v{H}, v{H}, v{H+4}
    v_mov_b32 v{H+1}, v{H}
    v_permlane32_swap_b32 v{H}, v{H+1}""")
    a(f"""v_cvt_pk_bf16_f32 v{H}, v{H}, v{H+1}
    v_and_b32 v{H+1}, 0xffff0000, v{H}
    v_lshlrev_b32 v{H}, 16, v{H}
    v_mul_f32 v{H+2}, {fl(-1.4426950408889634)}, v{H}
    v_exp_f32 v{H+2}, v{H+2}
    v_add_f32 v{H+2}, 1.0, v{H+2}
    v_rcp_f32 v{H+2}, v{H+2}
    v_mul_f32 v{H+2}, v{H}, v{H+2}
    v_cvt_pk_bf16_f32 v{H+2}, v{H+2}, v{H+2}
    v_lshlrev_b32 v{H+2}, 16, v{H+2}
    v_mul_f32 v{H+2}, v{H+2}, v{H+1}
    v_cvt_pk_bf16_f32 v{H+2}, v{H+2}, v{H+2}""")
    a(f"""v_and_b32 v1, 31, v{vL}
    v_lshlrev_b32 v1, 2, v1
    s_lshl_b32 s29, s{sWv}, 7
    s_add_u32 s29, s29, 6144
    v_add_u32 v1, s29, v1
    ds_write_b32 v1, v{H+2}
    s_waitcnt lgkmcnt(0)""")
    for fg in range(4): a(f"ds_read_b32 v{H+4+fg}, v27 offset:{32*fg}")
    a("s_waitcnt lgkmcnt(0)")
    stamp(a, 5)
    AD = 200
    for fg in range(4):
        for j in range(4): a(f"v_and_b32 v{AD+4*fg+j}, v{H+4+fg}, v{MK+j}")
    DA = 220
    a("s_waitcnt vmcnt(0)")
    for fg in range(4):
        for k in range(3):
            acc = DA + 4*k
            c = "0" if fg == 0 else f"v[{acc}:{acc+3}]"
            a(f"v_mfma_f32_16x16x32_bf16 v[{acc}:{acc+3}], v[{AD+4*fg}:{AD+4*fg+3}], v[{WD+16*k+4*fg}:{WD+16*k+4*fg+3}], {c}")
    a(f"""v_cmp_gt_u32 vcc, 8, v{vN}
    v_cmp_gt_u32 s[34:35], 32, v{vL}
    s_and_b64 s[34:35], s[34:35], vcc
    v_lshlrev_b32 v3, 5, v{vN}
    v_and_b32 v4, 1, v{vG}
    v_lshlrev_b32 v4, 4, v4
    v_add_u32 v1, v3, v4
    s_mul_i32 s29, s{sU}, 2304
    s_mul_i32 s30, s{sWv}, 768
    s_add_u32 s29, s29, s30
    s_add_u32 s29, s29, {WS_PART}""")
    for r in range(12): a(f"v_mov_b32 v{H+r}, v{DA+r}")
    for r in range(12): a(f"v_permlane32_swap_b32 v{DA+r}, v{H+r}")
    for r in range(12): a(f"v_add_f32 v{DA+r}, v{H+r}, v{DA+r} row_ror:8 row_mask:0xf bank_mask:0xf")
    a("s_mov_b64 exec, s[34:35]")
    for k in range(3):
        a(f"buffer_store_dwordx4 v[{DA+4*k}:{DA+4*k+3}], v1, s[{SWS}:{SWS+3}], s29 offen offset:{256*k}")
    a(f"s_branch {L}_done")
    a.label(f"{L}_help")
    srd(a, SDB, 42, 256); srd(a, SX, 4, XB); srd(a, SWS, 8, 0x400000)
    a(f"""v_lshlrev_b32 v1, 2, v5
    s_mov_b32 s30, 20000
    s_mov_b32 s35, 0x3f803f80
    v_mov_b32 v20, 0
    v_mov_b32 v21, 0
    v_mov_b32 v12, 0
    v_lshlrev_b32 v2, 3, v5""")
    a.label(f"{L}_poll")
    a(f"""buffer_load_dword v16, v1, s[{SDB}:{SDB+3}], 0 offen sc1
    s_waitcnt vmcnt(0)
    v_cmp_eq_u32 vcc, 0, v16
    s_cbranch_vccz {L}_got
    s_sub_u32 s30, s30, 1
    s_cmp_eq_u32 s30, 0
    s_cbranch_scc1 {L}_got
    s_sleep 1
    s_branch {L}_poll""")
    a.label(f"{L}_got")
    stamp(a, 1)
    dpp_red(a, "v_max_u32", [16]); hi_red(a, "v_max_u32", [16], [17])
    a(f"""v_readfirstlane_b32 s31, v16
    s_and_b32 s{sIdx}, s31, 0x7ff
    s_sub_u32 s{sIdx}, 2047, s{sIdx}
    s_mul_i32 s29, s{sIdx}, 1152""")
    for k in range(4): a(f"buffer_load_dword v{8+k}, v1, s[{SX}:{SX+3}], s29 offen offset:{256*k}")
    a(f"""s_mov_b32 s50, -1
    s_mov_b32 s51, 0
    s_mov_b64 exec, s[50:51]
    buffer_load_dword v12, v1, s[{SX}:{SX+3}], s29 offen offset:1024
    s_mov_b64 exec, -1
    s_and_b32 s32, s31, 0xfffff800
    s_xor_b32 s33, s32, 0x80000000
    s_not_b32 s34, s31
    s_or_b32 s34, s34, 0x400
    s_and_b32 s34, s34, 0xfffffc00
    s_cmp_lt_i32 s31, 0
    s_cselect_b32 s32, s33, s34
    v_mov_b32 v18, s{sIdx}
    v_mov_b32 v19, s32
    v_mov_b32 v3, {WS_SEL}
    s_waitcnt vmcnt(0)""")
    stamp(a, 2)
    for k in range(5):
        a(f"v_dot2_f32_bf16 v20, v{8+k}, s35, v20")
        a(f"v_dot2_f32_bf16 v21, v{8+k}, v{8+k}, v21")
    dpp_red(a, "v_add_f32", [20, 21]); hi_red(a, "v_add_f32", [20, 21], [22, 23])
    a(f"""v_mul_f32 v20, {fl(1/576)}, v20
    v_mul_f32 v21, {fl(1/576)}, v21
    v_fma_f32 v21, -v20, v20, v21
    v_max_f32 v21, 0, v21
    v_add_f32 v21, {fl(1e-5)}, v21
    v_rsq_f32 v21, v21""")
    for k in range(5):
        a(f"""v_lshlrev_b32 v24, 16, v{8+k}
        v_and_b32 v25, 0xffff0000, v{8+k}
        v_sub_f32 v24, v24, v20
        v_sub_f32 v25, v25, v20
        v_mul_f32 v24, v24, v21
        v_mul_f32 v25, v25, v21
        v_cvt_pk_bf16_f32 v{28+2*k}, v24, v24
        v_cvt_pk_bf16_f32 v{29+2*k}, v25, v25""")
        if k == 4: a("s_mov_b64 exec, s[50:51]")
        a(f"ds_write_b64 v2, v[{28+2*k}:{29+2*k}] offset:{512*k}")
    a(f"""s_mov_b64 exec, -1
    s_waitcnt lgkmcnt(0)
    s_barrier""")
    stamp(a, 3)
    a(f"""s_cmp_eq_u32 s{sU}, 0
    s_cbranch_scc0 {L}_done
    s_mov_b64 exec, 1
    buffer_store_dwordx2 v[18:19], v3, s[{SWS}:{SWS+3}], 0 offen
    s_mov_b64 exec, -1""")
    a.label(f"{L}_done")
```

```python
import sys
sys.path.insert(0, "gen")
from asmlib import *
import k1 as K1M
import k3 as K3M
from k1 import *
from k2 import *
from k3 import *
NAME = "parallel_sum__spectral_fnet__moe_arch_mod__prompt"
HDR = open("cdna_kernels/" + NAME + ".s.ref").read().split("; Override launch")[0]
opts = set(sys.argv[2:])
if "stamps" in opts: K1M.STAMPS = True
if "pfnt" in opts: K3M.PFMOD = " nt"
def desc(name, vgpr, sgpr=102):
    acc = (vgpr + 3)//4*4
    return f""".amdhsa_kernel {name}
  .amdhsa_next_free_vgpr {vgpr}
  .amdhsa_next_free_sgpr {sgpr}
  .amdhsa_accum_offset {acc}
  .amdhsa_group_segment_fixed_size 0
  .amdhsa_kernarg_size 104
  .amdhsa_user_sgpr_count 2
  .amdhsa_user_sgpr_kernarg_segment_ptr 1
  .amdhsa_system_sgpr_workgroup_id_x 1
.end_amdhsa_kernel
"""
def kern(name, body):
    return f""".globl {name}
.p2align 8
.type {name},@function
{name}:
{body}
    s_endpgm
"""
def k1():
    a = Asm()
    a("""s_cmp_ge_u32 s2, 256
    s_cbranch_scc1 k1_aux
    s_load_dwordx2 s[4:5], s[0:1], 0
    s_load_dwordx2 s[8:9], s[0:1], 96""")
    if "noprio" not in opts: a("s_setprio 3")
    a("s_waitcnt lgkmcnt(0)")
    stamp_init(a); stamp(a, 0)
    phase1(a, "k1", stat=False)
    stamp_flush(a, 0)
    a("s_endpgm")
    a.label("k1_aux")
    a("""s_cmp_ge_u32 s2, 512
    s_cbranch_scc1 k1_end
    s_load_dwordx2 s[4:5], s[0:1], 0
    s_load_dwordx2 s[6:7], s[0:1], 48
    s_load_dwordx4 s[36:39], s[0:1], 56
    s_load_dwordx2 s[40:41], s[0:1], 72
    s_load_dwordx2 s[42:43], s[0:1], 88
    s_load_dwordx2 s[8:9], s[0:1], 96
    s_cmp_ge_u32 s2, 320
    s_cbranch_scc1 k1_ns
    s_setprio 3
    s_sub_u32 s3, s2, 256
    s_waitcnt lgkmcnt(0)""")
    stamp_init(a); stamp(a, 0)
    statwg(a, "k1s", 3)
    stamp_flush(a, 0)
    a("s_endpgm")
    a.label("k1_ns")
    a("""s_sub_u32 s28, s2, 320
    s_cmp_ge_u32 s2, 368
    s_cbranch_scc1 k1_moe
    v_lshrrev_b32 v5, 6, v0
    v_readfirstlane_b32 s26, v5
    v_and_b32 v5, 63, v0
    s_cmp_eq_u32 s26, 3
    s_cbranch_scc1 k1_end
    s_waitcnt lgkmcnt(0)""")
    stamp_init(a); stamp(a, 0)
    if "nopf" not in opts: prefetch(a, 28, 26, 5, 8)
    stamp(a, 1)
    a("s_waitcnt vmcnt(0)")
    stamp_flush(a, 0)
    a("s_endpgm")
    a.label("k1_moe")
    a("""s_sub_u32 s3, s2, 368
    s_and_b32 s29, s3, 7
    s_mul_i32 s29, s29, 18
    s_lshr_b32 s3, s3, 3
    s_add_u32 s3, s3, s29
    s_waitcnt lgkmcnt(0)""")
    stamp_init(a); stamp(a, 0)
    moe2(a, "k1m", 3, 28, late_down=("earlydown" not in opts), pf=("nopf" not in opts))
    if K1M.STAMPS:
        a("""v_lshrrev_b32 v1, 6, v0
        s_nop 1
        v_readfirstlane_b32 s97, v1
        s_cmp_eq_u32 s97, 3
        s_cbranch_scc1 k1_hst""")
        stamp_flush(a, 0)
        a("s_endpgm")
        a.label("k1_hst")
        a("s_add_u32 s97, s2, 144")
        stamp_flush(a, 0, swg="s97", tid=192)
    a.label("k1_end")
    return a.text()
def k2():
    a = Asm()
    a("""s_cmp_ge_u32 s2, 288
    s_cbranch_scc1 k2_end
    s_load_dwordx2 s[4:5], s[0:1], 0
    s_load_dwordx2 s[10:11], s[0:1], 80
    s_load_dwordx2 s[8:9], s[0:1], 96
    s_mov_b32 s3, s2
    s_waitcnt lgkmcnt(0)""")
    stamp_init(a); stamp(a, 0)
    phase2(a, "k2p", 3, moe=True)
    stamp_flush(a, 2)
    a.label("k2_end")
    return a.text()
launch = f"""; @launch kernel=k1_kernel grid=(512,1,1) block=(256,1,1) lds=18432
; @launch kernel=k2_kernel grid=(288,1,1) block=(256,1,1) lds=9216
"""
src = HDR + launch + """.amdgcn_target "amdgcn-amd-amdhsa--gfx950"
.text
""" + kern("k1_kernel", k1()) + kern("k2_kernel", k2())
src += """.section .rodata,"a"
.p2align 6
""" + desc("k1_kernel", 256) + ".p2align 6\n" + desc("k2_kernel", 256 if K1M.STAMPS else 176)
open(sys.argv[1], "w").write(src)
print("written", sys.argv[1], len(src))
```

```python
from asmlib import *
import math
WS_V = 0
WS_STATS = 0x240000
WS_KEYS = 0x248000
WS_PART = 0x250000
XBYTES = 2048*1152
WSBYTES = 0x10000000

def fl(x):
    import struct
    return "0x%08x" % struct.unpack("<I", struct.pack("<f", x))[0]

WS_STAMP = 0x300000
STAMPS = False
HWID = False
QUIET = False
VST = ""
WLDS = False
XLDS = False
XB0 = 18496
def stamp(a, j):
    if STAMPS: a(f"s_memrealtime s[{64+2*j}:{65+2*j}]")
def stamp_init(a):
    if STAMPS:
        for j in range(16): a(f"s_mov_b32 s{64+j}, 0")
def stamp_flush(a, kern, nst=8, swg="s2", wsptr=8, tid=0):
    if not STAMPS: return
    if HWID: a("""s_getreg_b32 s76, hwreg(HW_REG_HW_ID)
    s_getreg_b32 s77, hwreg(HW_REG_XCC_ID)
    s_or_b32 s77, s77, 0x100""")
    a(f"""s_mov_b64 exec, -1
    s_waitcnt vmcnt(0)
    s_memrealtime s[78:79]
    s_mov_b32 s92, s{wsptr}
    s_mov_b32 s93, s{wsptr+1}
    s_mov_b32 s94, 0x400000
    s_mov_b32 s95, 0x00020000
    s_add_u32 s96, {swg}, {kern*512}
    s_mul_i32 s96, s96, {nst*8}
    s_add_u32 s96, s96, {WS_STAMP}
    s_waitcnt lgkmcnt(0)
    v_mov_b32 v253, s96
    v_mov_b32 v254, {tid}
    v_cmp_eq_u32 s[98:99], v254, v0
    s_and_saveexec_b64 s[96:97], s[98:99]""")
    for j in range(8):
        a(f"""v_mov_b32 v254, s{64+2*j}
        v_mov_b32 v255, s{65+2*j}
        buffer_store_dwordx2 v[254:255], v253, s[92:95], 0 offen offset:{8*j}
        s_nop 1""")
    a("s_mov_b64 exec, s[96:97]")

def srd(a, dst, ptr, nbytes):
    a(f"""s_mov_b32 s{dst}, s{ptr}
    s_mov_b32 s{dst+1}, s{ptr+1}
    s_mov_b32 s{dst+2}, {nbytes}
    s_mov_b32 s{dst+3}, 0x00020000""")

def cheb_group(a, T, th0, dl, c2, n, cosdst, sindst):
    a(f"v_cos_f32 v{T}, v{th0}")
    a(f"v_sin_f32 v{T+1}, v{th0}")
    a(f"v_add_f32 v{th0}, v{th0}, v{dl}")
    a(f"v_cos_f32 v{T+2}, v{th0}")
    a(f"v_sin_f32 v{T+3}, v{th0}")
    for j in range(2, n):
        a(f"v_pk_fma_f32 v[{T+2*j}:{T+2*j+1}], v[{c2}:{c2+1}], v[{T+2*j-2}:{T+2*j-1}], v[{T+2*j-4}:{T+2*j-3}] op_sel_hi:[0,1,1] neg_lo:[0,0,1] neg_hi:[0,0,1]")
    for i in range(n//2):
        a(f"v_cvt_pk_bf16_f32 v{cosdst+i}, v{T+4*i}, v{T+4*i+2}")
        a(f"v_cvt_pk_bf16_f32 v{sindst+i}, v{T+4*i+1}, v{T+4*i+3}")

def unpack_fwd(a, dst, src):
    a(f"v_lshlrev_b32 v{dst}, 16, v{src}")
    a(f"v_and_b32 v{dst+1}, 0xffff0000, v{src}")
def unpack_rev(a, dst, src):
    a(f"v_and_b32 v{dst}, 0xffff0000, v{src}")
    a(f"v_lshlrev_b32 v{dst+1}, 16, v{src}")

def reduce_ag(a, r, t):
    a(f"v_add_f32 v{r}, v{r}, v{r} row_ror:8 row_mask:0xf bank_mask:0xf")
def reduce_hi(a, regs, tmps):
    for r, t in zip(regs, tmps): a(f"v_mov_b32 v{t}, v{r}")
    for r, t in zip(regs, tmps): a(f"v_permlane16_swap_b32 v{r}, v{t}")
    for r, t in zip(regs, tmps): a(f"v_add_f32 v{r}, v{r}, v{t}")
    for r, t in zip(regs, tmps): a(f"v_mov_b32 v{t}, v{r}")
    for r, t in zip(regs, tmps): a(f"v_permlane32_swap_b32 v{r}, v{t}")
    for r, t in zip(regs, tmps): a(f"v_add_f32 v{r}, v{r}, v{t}")

def phase1(a, L, stat=True):
    SX, SW, SWS = 12, 16, 20
    sS2, sQ, sP, sH, sWv = 24, 25, 26, 27, 28
    srd(a, SX, 4, XBYTES); srd(a, SW, 6, 1152); srd(a, SWS, 8, 0x400000)
    if QUIET:
        a(f"""s_lshr_b32 s29, s2, 3
        s_mul_i32 s31, s29, 43
        s_lshr_b32 s31, s31, 7
        s_mul_i32 s30, s31, 3
        s_sub_u32 s{sQ}, s29, s30
        s_sub_u32 s30, s29, 24
        s_cmp_ge_u32 s29, 24
        s_cselect_b32 s31, s30, s31
        s_cselect_b32 s{sQ}, 3, s{sQ}
        s_and_b32 s30, s2, 7
        s_lshl_b32 s30, s30, 3
        s_add_u32 s{sS2}, s30, s31""")
    else:
        a(f"""s_lshr_b32 s29, s2, 3
        s_and_b32 s30, s2, 7
        s_lshl_b32 s30, s30, 3
        s_lshr_b32 s31, s29, 2
        s_add_u32 s{sS2}, s30, s31
        s_and_b32 s{sQ}, s29, 3""")
    a(f"""s_and_b32 s{sP}, s{sQ}, 1
    s_lshr_b32 s{sH}, s{sQ}, 1
    v_lshrrev_b32 v5, 6, v0
    v_readfirstlane_b32 s{sWv}, v5
    v_and_b32 v5, 63, v0""")
    vL, vP, vQ, vP2, vQ2 = 5, 1, 2, 3, 4
    X = lambda i, k: 8 + i*16 + k*4
    W = lambda i, k: 56 + i*16 + k*4
    vRR, vAG = 204, 205
    a(f"""v_and_b32 v{vRR}, 7, v{vL}
    v_lshrrev_b32 v{vAG}, 3, v{vL}
    s_lshl_b32 s29, s{sWv}, 9
    s_add_u32 s29, s29, s{sS2}
    v_lshlrev_b32 v206, 6, v{vRR}
    v_add_u32 v206, s29, v206""")
    vROW = 206
    a(f"""s_movk_i32 s29, 1152
    v_mul_lo_u32 v207, v{vROW}, s29
    v_lshlrev_b32 v208, 4, v{vAG}
    v_add_u32 v{vP}, v207, v208
    v_sub_u32 v{vQ}, v207, v208
    v_add_u32 v{vQ}, 304, v{vQ}
    v_cmp_gt_u32 vcc, 2, v{vAG}
    v_mov_b32 v209, 0x7ff00000
    v_cndmask_b32 v{vP2}, v209, v{vP}, vcc
    v_cndmask_b32 v{vQ2}, v209, v{vQ}, vcc""")
    if stat: a(f"""s_cmp_eq_u32 s{sQ}, 3
    s_cbranch_scc0 {L}_now""")
    if WLDS:
        a(f"""s_mul_i32 s29, s{sWv}, 1152
        s_add_u32 s29, s29, {XB0 + 4*9216}
        s_mov_b32 m0, s29
        v_lshlrev_b32 v210, 4, v{vL}
        buffer_load_dwordx4 v210, s[{SW}:{SW+3}], 0 offen lds
        s_mov_b64 exec, 0xff
        buffer_load_dwordx4 v210, s[{SW}:{SW+3}], 0 offen offset:1024 lds
        s_mov_b64 exec, -1
        v_add_u32 v211, s29, v208
        v_sub_u32 v212, {7*16}, v208
        v_add_u32 v212, s29, v212""")
    else:
        if stat: a(f"""v_sub_u32 v210, 304, v208
        v_cndmask_b32 v211, v209, v208, vcc
        v_cndmask_b32 v212, v209, v210, vcc""")
        for i in (range(3) if stat else []):
            p_, q_ = (208, 210) if i < 2 else (211, 212)
            a(f"buffer_load_dwordx4 v[{W(i,0)}:{W(i,0)+3}], v{p_}, s[{SW}:{SW+3}], 0 offen offset:{128*i}")
            a(f"buffer_load_dwordx4 v[{W(i,1)}:{W(i,1)+3}], v{q_}, s[{SW}:{SW+3}], 0 offen offset:{832-128*i}")
            a(f"buffer_load_dwordx4 v[{W(i,2)}:{W(i,2)+3}], v{q_}, s[{SW}:{SW+3}], 0 offen offset:{256-128*i}")
            a(f"buffer_load_dwordx4 v[{W(i,3)}:{W(i,3)+3}], v{p_}, s[{SW}:{SW+3}], 0 offen offset:{576+128*i}")
    a.label(f"{L}_now")
    if XLDS:
        a(f"""s_mul_i32 s29, s{sWv}, 9216
        s_add_u32 s29, s29, {XB0}""")
        for j in (0, 8, 4, 3, 5, 1, 7, 2, 6):
            a(f"""s_add_u32 m0, s29, {896*j}
            s_nop 0
            buffer_load_dwordx4 v{vP}, s[{SX}:{SX+3}], 0 offen offset:{128*j} lds""")
        a(f"""v_lshlrev_b32 v{vP2}, 4, v{vRR}
        v_add_u32 v{vP2}, s29, v{vP2}
        v_lshlrev_b32 v{vQ2}, 7, v{vAG}
        v_sub_u32 v{vQ}, {7*128}, v{vQ2}
        v_add_u32 v{vQ}, v{vQ}, v{vP2}
        v_add_u32 v{vP2}, v{vQ2}, v{vP2}""")
        for r in range(40, 56): a(f"v_mov_b32 v{r}, 0")
    else:
        for i in range(3):
            p_, q_ = (vP, vQ) if i < 2 else (vP2, vQ2)
            a(f"buffer_load_dwordx4 v[{X(i,0)}:{X(i,0)+3}], v{p_}, s[{SX}:{SX+3}], 0 offen offset:{128*i}")
            a(f"buffer_load_dwordx4 v[{X(i,1)}:{X(i,1)+3}], v{q_}, s[{SX}:{SX+3}], 0 offen offset:{832-128*i}")
            a(f"buffer_load_dwordx4 v[{X(i,2)}:{X(i,2)+3}], v{q_}, s[{SX}:{SX+3}], 0 offen offset:{256-128*i}")
            a(f"buffer_load_dwordx4 v[{X(i,3)}:{X(i,3)+3}], v{p_}, s[{SX}:{SX+3}], 0 offen offset:{576+128*i}")
    stamp(a, 1)
    vN, vG = 213, 214
    a(f"""v_and_b32 v{vN}, 15, v{vL}
    v_lshrrev_b32 v{vG}, 4, v{vL}""")
    HB = [104, 140]
    BETA = [200, 202]
    T = 216
    vFE, vTH, vDL, vC2, vU, vUt, vST = 232, 233, 234, 236, 238, 239, 240
    a(f"""v_cvt_f32_u32 v{vU}, v{vG}
    v_mov_b32 v{vUt}, {fl(257/1152)}
    v_mov_b32 v241, {fl(8/1152)}
    v_fmac_f32 v{vUt}, v{vU}, v241
    v_mov_b32 v241, {fl(16/1152)}
    v_mov_b32 v242, {fl(1/1152)}
    v_fma_f32 v{vU}, v{vU}, v241, v242""")
    def hidden(tile, sblk):
        a(f"""s_lshl_b32 s29, s{sblk}, 5
        s_add_u32 s29, s29, s{sP}
        s_add_u32 s29, s29, 1
        v_lshlrev_b32 v{vFE}, 1, v{vN}
        v_add_u32 v{vFE}, s29, v{vFE}
        v_cvt_f32_u32 v{vFE}, v{vFE}
        v_mul_f32 v{vDL}, {fl(1/576)}, v{vFE}
        v_mul_f32 v{vTH}, {fl(1/1152)}, v{vFE}
        v_cos_f32 v{vC2}, v{vDL}
        v_cos_f32 v{BETA[tile]}, v{vTH}
        v_sin_f32 v{BETA[tile]+1}, v{vTH}
        v_mul_f32 v{vST}, {fl(64/1152)}, v{vFE}
        v_add_f32 v{vC2}, v{vC2}, v{vC2}
        v_mul_f32 v241, v{vFE}, v{vU}""")
        for st in range(4):
            a(f"v_mov_b32 v{vTH}, v241")
            cheb_group(a, T, vTH, vDL, vC2, 8, HB[tile] + 4*st, HB[tile] + 18 + 4*st)
            if st < 3: a(f"v_add_f32 v241, v241, v{vST}")
        a(f"v_mul_f32 v{vTH}, v{vFE}, v{vUt}")
        cheb_group(a, T, vTH, vDL, vC2, 4, HB[tile] + 16, HB[tile] + 34)
    sB0, sB1 = 32, 33
    a(f"""s_mul_i32 s{sB0}, s{sH}, 5
    s_add_u32 s{sB0}, s{sB0}, s{sWv}
    s_movk_i32 s{sB1}, 4""")
    hidden(0, sB0)
    a(f"""s_lshl_b32 s34, s{sH}, 2
    s_or_b32 s34, s34, s{sWv}
    s_cmp_eq_u32 s34, 0
    s_cbranch_scc0 {L}_no2""")
    hidden(1, sB1)
    a.label(f"{L}_no2")
    FB = 176
    a(f"""v_and_b32 v243, 1, v{vN}
    v_mul_u32_u24 v243, 0x8000, v243
    v_lshlrev_b32 v244, 16, v243
    v_or_b32 v243, v243, v244
    v_mov_b32 v244, 0x80008000
    v_lshlrev_b32 v245, 8, v{vG}
    v_add_u32 v245, s{sS2}, v245
    v_cvt_f32_u32 v245, v245
    v_mul_f32 v245, {fl(1/2048)}, v245""")
    for tt in range(2):
        cb, sb, nb = FB + tt*12, FB + tt*12 + 4, FB + tt*12 + 8
        a(f"""v_add_u32 v{vFE}, {16*tt}, v{vN}
        v_cvt_f32_u32 v{vFE}, v{vFE}
        v_mul_f32 v{vDL}, {fl(1/32)}, v{vFE}
        v_mul_f32 v{vTH}, v{vFE}, v245
        v_cos_f32 v{vC2}, v{vDL}
        s_nop 0
        v_add_f32 v{vC2}, v{vC2}, v{vC2}""")
        cheb_group(a, T, vTH, vDL, vC2, 4, cb, sb)
        a(f"""v_xor_b32 v{cb+2}, v{cb}, v243
        v_xor_b32 v{cb+3}, v{cb+1}, v243
        v_xor_b32 v{sb+2}, v{sb}, v243
        v_xor_b32 v{sb+3}, v{sb+1}, v243""")
        for i in range(4): a(f"v_xor_b32 v{nb+i}, v{sb+i}, v244")
    vWA, vWT = 246, 247
    a(f"""s_lshr_b32 s29, s{sWv}, 1
    s_mul_i32 s29, s29, 4608
    s_and_b32 s30, s{sWv}, 1
    s_lshl_b32 s30, s30, 3
    v_add_u32 v248, s30, v{vRR}
    v_lshrrev_b32 v249, 2, v{vAG}
    v_lshlrev_b32 v249, 10, v249
    v_and_b32 v250, 3, v{vAG}
    v_lshlrev_b32 v250, 8, v250
    v_add_u32 v249, v249, v250
    v_lshlrev_b32 v250, 4, v248
    v_add3_u32 v{vWA}, v249, v250, s29
    v_lshlrev_b32 v249, 8, v{vAG}
    v_lshlrev_b32 v250, 3, v248
    v_add3_u32 v{vWT}, v249, v250, s29""")
    stamp(a, 2)
    vSUM, vSQ, vDOT, vSW = 216, 217, 218, 219
    a(f"""v_mov_b32 v{vSUM}, 0
    v_mov_b32 v{vSQ}, 0
    v_mov_b32 v{vDOT}, 0
    v_mov_b32 v{vSW}, 0
    s_mov_b32 s35, 0x3f803f80""")
    if stat: a(f"""s_cmp_eq_u32 s{sQ}, 3
    s_cbranch_scc1 {L}_st3""")
    def xreads(i):
        vA, vB = vP2, vQ
        if i == 2: a("s_mov_b64 exec, 0xffff")
        a(f"ds_read_b128 v[{X(i,0)}:{X(i,0)+3}], v{vA} offset:{1024*i}")
        a(f"ds_read_b128 v[{X(i,1)}:{X(i,1)+3}], v{vB} offset:{8192-1024*i}")
        a(f"ds_read_b128 v[{X(i,2)}:{X(i,2)+3}], v{vB} offset:{3584-1024*i}")
        a(f"ds_read_b128 v[{X(i,3)}:{X(i,3)+3}], v{vA} offset:{4608+1024*i}")
        if i == 2: a("s_mov_b64 exec, -1")
    def dots(i, q3):
        for r in range(8+16*i, 24+16*i):
            if q3: a(f"v_dot2_f32_bf16 v{vDOT}, v{r}, v{r+48}, v{vDOT}")
            a(f"v_dot2_f32_bf16 v{vSUM}, v{r}, s35, v{vSUM}")
            a(f"v_dot2_f32_bf16 v{vSQ}, v{r}, v{r}, v{vSQ}")
    def stats_body(q3):
        if XLDS:
            a("s_waitcnt vmcnt(4)"); xreads(0); a("s_waitcnt lgkmcnt(0)"); dots(0, q3)
            a("s_waitcnt vmcnt(0)"); xreads(1); xreads(2)
            a("s_waitcnt lgkmcnt(0)"); dots(1, q3); dots(2, q3)
        else:
            for i in range(3):
                a(f"s_waitcnt vmcnt({8-4*i})"); dots(i, q3)
    stats_body(False)
    if stat:
      a(f"s_branch {L}_st")
      a.label(f"{L}_st3")
      a(f"s_waitcnt vmcnt({9 if XLDS else 12})")
      if WLDS:
        for r in range(88, 104): a(f"v_mov_b32 v{r}, 0")
        for i in range(3):
            if i == 2: a("s_mov_b64 exec, 0xffff")
            a(f"ds_read_b128 v[{W(i,0)}:{W(i,0)+3}], v211 offset:{128*i}")
            a(f"ds_read_b128 v[{W(i,1)}:{W(i,1)+3}], v212 offset:{1024-128*i}")
            a(f"ds_read_b128 v[{W(i,2)}:{W(i,2)+3}], v212 offset:{448-128*i}")
            a(f"ds_read_b128 v[{W(i,3)}:{W(i,3)+3}], v211 offset:{576+128*i}")
        a("s_mov_b64 exec, -1")
        a("s_waitcnt lgkmcnt(0)")
      for r in range(8, 56):
        a(f"v_dot2_f32_bf16 v{vSW}, v{r+48}, s35, v{vSW}")
      stats_body(True)
    a.label(f"{L}_st")
    stamp(a, 3)
    regs = [vSUM, vSQ, vDOT, vSW]; tm = [220, 221, 222, 223]
    if not stat: regs = regs[:2]; tm = tm[:2]
    for r in regs: a(f"v_add_f32 v{r}, v{r}, v{r} row_ror:8 row_mask:0xf bank_mask:0xf")
    reduce_hi(a, regs, tm)
    vM, vRS = 224, 226
    a(f"""v_mul_f32 v{vM}, {fl(1/576)}, v{vSUM}
    v_mul_f32 v{vSQ}, {fl(1/576)}, v{vSQ}
    v_fma_f32 v{vSQ}, -v{vM}, v{vM}, v{vSQ}
    v_max_f32 v{vSQ}, 0, v{vSQ}
    v_add_f32 v{vSQ}, {fl(1e-5)}, v{vSQ}
    v_rsq_f32 v{vRS}, v{vSQ}
    s_cmp_eq_u32 s{sP}, 1
    s_cselect_b32 s29, 1.0, -1.0
    s_cselect_b32 s30, -4.0, 0
    v_mul_f32 v{vRS+1}, s29, v{vRS}
    v_mul_f32 v228, v{vM}, v{vRS}
    v_mul_f32 v228, s30, v228""")
    if stat: a(f"""s_cmp_eq_u32 s{sQ}, 3
    s_cbranch_scc0 {L}_nost
    v_fma_f32 v{vDOT}, -v{vM}, v{vSW}, v{vDOT}
    v_mul_f32 v{vDOT}, v{vDOT}, v{vRS}
    v_mov_b32 v220, v{vM}
    v_mov_b32 v221, v{vRS}
    v_mov_b32 v222, v{vDOT}
    v_mov_b32 v223, 0
    v_and_b32 v230, 31, v{vROW}
    v_lshrrev_b32 v225, 5, v{vROW}
    v_lshl_add_u32 v230, v230, 6, v225
    v_lshlrev_b32 v230, 3, v230
    v_add_u32 v230, {WS_STATS}, v230
    v_ashrrev_i32 v231, 31, v{vDOT}
    v_or_b32 v231, 0x80000000, v231
    v_xor_b32 v231, v231, v{vDOT}
    v_and_b32 v231, 0xfffff800, v231
    v_sub_u32 v225, 2047, v{vROW}
    v_or_b32 v231, v231, v225
    v_max_u32 v231, v231, v231 quad_perm:[1,0,3,2] row_mask:0xf bank_mask:0xf
    v_max_u32 v231, v231, v231 quad_perm:[2,3,0,1] row_mask:0xf bank_mask:0xf
    v_max_u32 v231, v231, v231 row_half_mirror row_mask:0xf bank_mask:0xf
    s_lshl_b32 s29, s{sWv}, 2
    v_mov_b32 v225, s29
    ds_write_b32 v225, v231 offset:18432
    s_mov_b64 s[36:37], exec
    s_mov_b64 exec, 0xff
    buffer_store_dwordx2 v[220:221], v230, s[{SWS}:{SWS+3}], 0 offen
    s_mov_b64 exec, s[36:37]
    s_waitcnt lgkmcnt(0)
    s_barrier
    s_cmp_eq_u32 s{sWv}, 0
    s_cbranch_scc0 {L}_nost
    v_mov_b32 v252, 0
    ds_read_b128 v[248:251], v252 offset:18432
    s_mov_b32 s44, s42
    s_mov_b32 s45, s43
    s_mov_b32 s46, 256
    s_mov_b32 s47, 0x00020000
    s_lshl_b32 s29, s{sS2}, 2
    v_mov_b32 v252, s29
    s_waitcnt lgkmcnt(0)
    v_max_u32 v248, v248, v249
    v_max_u32 v250, v250, v251
    v_max_u32 v248, v248, v250
    s_mov_b64 exec, 1
    buffer_store_dword v248, v252, s[44:47], 0 offen sc1
    s_mov_b64 exec, s[36:37]""")
    a.label(f"{L}_nost")
    stamp(a, 4)
    Pf, Qf, Rf, Uf = 56, 64, 72, 80
    CO, SO = 88, 92
    for i in range(3):
        for j in range(4):
            unpack_fwd(a, Pf + 2*j, X(i, 0) + j)
            unpack_rev(a, Qf + 2*j, X(i, 1) + 3 - j)
            unpack_rev(a, Rf + 2*j, X(i, 2) + 3 - j)
            unpack_fwd(a, Uf + 2*j, X(i, 3) + j)
        for j in range(4):
            p_, q_, r_, u_ = Pf+2*j, Qf+2*j, Rf+2*j, Uf+2*j
            t0, t1 = 96, 98
            a(f"v_pk_add_f32 v[{t0}:{t0+1}], v[{p_}:{p_+1}], v[{q_}:{q_+1}]")
            a(f"v_pk_add_f32 v[{p_}:{p_+1}], v[{p_}:{p_+1}], v[{q_}:{q_+1}] neg_lo:[0,1] neg_hi:[0,1]")
            a(f"v_pk_add_f32 v[{t1}:{t1+1}], v[{u_}:{u_+1}], v[{r_}:{r_+1}]")
            a(f"v_pk_add_f32 v[{u_}:{u_+1}], v[{u_}:{u_+1}], v[{r_}:{r_+1}] neg_lo:[0,1] neg_hi:[0,1]")
            a(f"v_pk_fma_f32 v[{t1}:{t1+1}], v[{t1}:{t1+1}], v[{vRS}:{vRS+1}], v[228:229] op_sel:[0,1,0] op_sel_hi:[1,1,0]")
            a(f"v_pk_mul_f32 v[{u_}:{u_+1}], v[{u_}:{u_+1}], v[{vRS}:{vRS+1}] op_sel:[0,1] op_sel_hi:[1,1]")
            a(f"v_pk_fma_f32 v[{t0}:{t0+1}], v[{t0}:{t0+1}], v[{vRS}:{vRS+1}], v[{t1}:{t1+1}] op_sel_hi:[1,0,1]")
            a(f"v_pk_fma_f32 v[{p_}:{p_+1}], v[{p_}:{p_+1}], v[{vRS}:{vRS+1}], v[{u_}:{u_+1}] op_sel_hi:[1,0,1]")
            a(f"v_cvt_pk_bf16_f32 v{CO+j}, v{t0}, v{t0+1}")
            a(f"v_cvt_pk_bf16_f32 v{SO+j}, v{p_}, v{p_+1}")
        if i < 2:
            a(f"ds_write_b128 v{vWA}, v[{CO}:{CO+3}] offset:{2048*i}")
            a(f"ds_write_b128 v{vWA}, v[{SO}:{SO+3}] offset:{2048*i+9216}")
        else:
            a(f"""s_mov_b64 s[36:37], exec
            s_mov_b64 exec, 0xffff
            ds_write_b64 v{vWT}, v[{CO}:{CO+1}] offset:4096
            ds_write_b64 v{vWT}, v[{CO+2}:{CO+3}] offset:{4096+128}
            ds_write_b64 v{vWT}, v[{SO}:{SO+1}] offset:{4096+9216}
            ds_write_b64 v{vWT}, v[{SO+2}:{SO+3}] offset:{4096+128+9216}
            s_mov_b64 exec, s[36:37]""")
    a("s_waitcnt lgkmcnt(0)")
    a("s_barrier")
    stamp(a, 5)
    AF = lambda f, rt, st: 8 + (f*2 + rt)*18 + st*4
    a(f"""v_lshlrev_b32 v1, 4, v{vL}
    v_lshlrev_b32 v2, 3, v{vL}""")
    for st in range(4):
        for f in range(2):
            for rt in range(2):
                a(f"ds_read_b128 v[{AF(f,rt,st)}:{AF(f,rt,st)+3}], v1 offset:{f*9216+rt*4608+st*1024}")
    for f in range(2):
        for rt in range(2):
            a(f"ds_read_b64 v[{AF(f,rt,4)}:{AF(f,rt,4)+1}], v2 offset:{f*9216+rt*4608+4096}")
    vVA = 3
    a(f"""s_mov_b32 s29, 73728
    v_mul_lo_u32 v{vVA}, v{vN}, s29
    v_lshlrev_b32 v4, 4, v{vG}
    s_mul_i32 s30, s{sS2}, 1152
    s_lshl_b32 s31, s{sP}, 6
    s_add_u32 s30, s30, s31
    v_add3_u32 v{vVA}, v{vVA}, v4, s30""")
    ACC = 80
    def tile(t, sblk, first):
        hb = HB[t]
        for st in range(5):
            if first:
                left = 16 + 4 - 4*(st+1) if st < 4 else 0
                a(f"s_waitcnt lgkmcnt({min(left,15)})")
            for f in range(2):
                for rt in range(2):
                    acc = ACC + f*8 + rt*4
                    c = "0" if st == 0 else f"v[{acc}:{acc+3}]"
                    if st < 4:
                        a(f"v_mfma_f32_16x16x32_bf16 v[{acc}:{acc+3}], v[{AF(f,rt,st)}:{AF(f,rt,st)+3}], v[{hb+18*f+4*st}:{hb+18*f+4*st+3}], {c}")
                    else:
                        a(f"v_mfma_f32_16x16x16_bf16 v[{acc}:{acc+3}], v[{AF(f,rt,4)}:{AF(f,rt,4)+1}], v[{hb+18*f+16}:{hb+18*f+17}], {c}")
        B = BETA[t]
        R0 = 96
        for rt in range(2):
            for j in range(2):
                c_ = ACC + rt*4 + 2*j; s_ = ACC + 8 + rt*4 + 2*j; o = R0 + rt*4 + 2*j
                a(f"v_pk_mul_f32 v[{o}:{o+1}], v[{c_}:{c_+1}], v[{B}:{B+1}] op_sel_hi:[1,0]")
                a(f"v_pk_fma_f32 v[{o}:{o+1}], v[{s_}:{s_+1}], v[{B}:{B+1}], v[{o}:{o+1}] op_sel:[0,1,0] op_sel_hi:[1,1,1]")
                a(f"v_pk_mul_f32 v[{s_}:{s_+1}], v[{s_}:{s_+1}], v[{B}:{B+1}] op_sel_hi:[1,0]")
                a(f"v_pk_fma_f32 v[{s_}:{s_+1}], v[{c_}:{c_+1}], v[{B}:{B+1}], v[{s_}:{s_+1}] op_sel:[0,1,0] op_sel_hi:[1,1,1] neg_lo:[1,0,0] neg_hi:[1,0,0]")
        A2C, A2S = 104 - 24, 104 - 20
        A2C, A2S = 80, 84
        for i in range(4): a(f"v_cvt_pk_bf16_f32 v{A2C+i}, v{R0+2*i}, v{R0+2*i+1}")
        for i in range(4): a(f"v_cvt_pk_bf16_f32 v{A2S+i}, v{ACC+8+2*i}, v{ACC+8+2*i+1}")
        O = 88
        for tt in range(2):
            cb, sb, nb = FB + tt*12, FB + tt*12 + 4, FB + tt*12 + 8
            o = O + tt*8
            a(f"v_mfma_f32_16x16x32_bf16 v[{o}:{o+3}], v[{A2C}:{A2C+3}], v[{cb}:{cb+3}], 0")
            a(f"v_mfma_f32_16x16x32_bf16 v[{o+4}:{o+7}], v[{A2C}:{A2C+3}], v[{sb}:{sb+3}], 0")
        for tt in range(2):
            cb, sb, nb = FB + tt*12, FB + tt*12 + 4, FB + tt*12 + 8
            o = O + tt*8
            a(f"v_mfma_f32_16x16x32_bf16 v[{o}:{o+3}], v[{A2S}:{A2S+3}], v[{nb}:{nb+3}], v[{o}:{o+3}]")
            a(f"v_mfma_f32_16x16x32_bf16 v[{o+4}:{o+7}], v[{A2S}:{A2S+3}], v[{cb}:{cb+3}], v[{o+4}:{o+7}]")
        a(f"s_lshl_b32 s29, s{sblk}, 7")
        for tt in range(2):
            o = O + tt*8; pk = 204 + tt*4
            for i in range(4): a(f"v_cvt_pk_bf16_f32 v{pk+i}, v{o+2*i}, v{o+2*i+1}")
            a(f"s_add_u32 s30, s29, {tt*16*73728}")
            a(f"buffer_store_dwordx4 v[{pk}:{pk+3}], v{vVA}, s[{SWS}:{SWS+3}], s30 offen{VST}")
    tile(0, sB0, True)
    stamp(a, 6)
    a(f"""s_cmp_eq_u32 s34, 0
    s_cbranch_scc0 {L}_done""")
    tile(1, sB1, False)
    a.label(f"{L}_done")
```

```python
from asmlib import *
from k1 import *
OUTBYTES = XBYTES
OST = ""
SWAP = False

def phase2(a, L, sU=2, moe=False):
    SX, SO, SWS = 12, 16, 20
    sT1, sB, sWv = 24, 25, 26
    if moe: a("""s_mov_b32 s46, 0x249000
    s_load_dwordx2 s[44:45], s[8:9], s46""")
    srd(a, SX, 4, XBYTES); srd(a, SO, 10, OUTBYTES); srd(a, SWS, 8, 0x400000)
    a(f"""s_and_b32 s29, s{sU}, 31
    s_lshr_b32 s{sB}, s{sU}, 5
    s_xor_b32 s30, s{sB}, 1
    s_cmp_lt_u32 s{sB}, 2
    s_cselect_b32 s{sB}, s30, s{sB}
    s_xor_b32 s30, s29, 16
    s_cmp_eq_u32 s{sB}, 8
    s_cselect_b32 s29, s30, s29""")
    if SWAP and moe:
        a(f"""s_cmp_eq_u32 s{sB}, 8
        s_cbranch_scc1 {L}_sw
        s_cmp_eq_u32 s{sB}, 4
        s_cbranch_scc0 {L}_nsw""")
        a.label(f"{L}_sw")
        a(f"""s_xor_b32 s31, s29, 16
        s_cmp_eq_u32 s{sB}, 8
        s_cselect_b32 s30, s29, s31
        s_and_b32 s31, s30, 7
        s_lshr_b32 s32, s30, 3
        s_lshl_b32 s31, s31, 1
        s_lshr_b32 s32, s32, 1
        s_add_u32 s31, s31, s32
        s_waitcnt lgkmcnt(0)
        s_and_b32 s32, s44, 31
        s_sub_u32 s33, 32, s32
        s_min_u32 s33, s32, s33
        s_cmp_eq_u32 s32, 16
        s_cselect_b32 s33, 0, s33
        s_cmp_eq_u32 s33, s31
        s_cbranch_scc0 {L}_nsw
        s_xor_b32 s29, s29, 16
        s_sub_u32 s{sB}, 12, s{sB}""")
        a.label(f"{L}_nsw")
    a(f"""s_and_b32 s30, s29, 7
    s_lshr_b32 s31, s29, 3
    s_lshl_b32 s30, s30, 1
    s_lshr_b32 s32, s31, 1
    s_add_u32 s30, s30, s32
    s_sub_u32 s32, 32, s30
    s_cmp_eq_u32 s30, 0
    s_cselect_b32 s32, 16, s32
    s_and_b32 s31, s31, 1
    s_cmp_eq_u32 s31, 1
    s_cselect_b32 s{sT1}, s32, s30
    v_lshrrev_b32 v5, 6, v0
    v_readfirstlane_b32 s{sWv}, v5
    v_and_b32 v5, 63, v0""")
    vL = 5
    a(f"""v_lshrrev_b32 v1, 3, v0
    v_and_b32 v2, 7, v0
    s_movk_i32 s29, 1152
    v_mul_lo_u32 v3, v1, s29
    v_lshlrev_b32 v4, 4, v2
    s_mul_i32 s30, s{sT1}, 73728
    s_lshl_b32 s31, s{sB}, 7
    s_add_u32 s30, s30, s31
    v_add3_u32 v3, v3, v4, s30
    buffer_load_dwordx4 v[8:11], v3, s[{SWS}:{SWS+3}], 0 offen
    s_mov_b32 s31, {32*1152}
    buffer_load_dwordx4 v[12:15], v3, s[{SWS}:{SWS+3}], s31 offen""")
    a(f"""v_lshrrev_b32 v4, 2, v2
    v_mul_u32_u24 v4, 4224, v4
    v_and_b32 v6, 3, v2
    v_lshlrev_b32 v6, 3, v6
    v_lshlrev_b32 v7, 5, v1
    v_add3_u32 v4, v4, v6, v7""")
    vN, vG, vT, vTM = 16, 17, 18, 19
    a(f"""v_and_b32 v{vN}, 15, v{vL}
    v_lshrrev_b32 v{vG}, 4, v{vL}
    s_lshl_b32 s29, s{sWv}, 4
    v_add_u32 v{vT}, s29, v{vN}
    v_lshlrev_b32 v{vT}, 5, v{vT}
    v_add_u32 v{vT}, s{sT1}, v{vT}
    v_sub_u32 v{vTM}, 2048, v{vT}
    v_and_b32 v{vTM}, 2047, v{vTM}
    s_movk_i32 s29, 1152
    v_mul_lo_u32 v20, v{vT}, s29
    v_mul_lo_u32 v21, v{vTM}, s29
    v_lshlrev_b32 v22, 4, v{vG}
    s_lshl_b32 s30, s{sB}, 6
    s_add_u32 s31, s30, 2
    v_add3_u32 v20, v20, v22, s31
    s_sub_u32 s31, 1136, s30
    v_sub_u32 v21, v21, v22
    v_add_u32 v21, s31, v21
    buffer_load_dwordx4 v[24:27], v20, s[{SX}:{SX+3}], 0 offen
    buffer_load_dwordx4 v[28:31], v21, s[{SX}:{SX+3}], 0 offen
    v_and_b32 v22, 31, v{vT}
    v_lshrrev_b32 v23, 5, v{vT}
    v_lshl_add_u32 v22, v22, 6, v23
    v_lshlrev_b32 v22, 3, v22
    v_and_b32 v23, 31, v{vTM}
    v_lshrrev_b32 v36, 5, v{vTM}
    v_lshl_add_u32 v23, v23, 6, v36
    v_lshlrev_b32 v23, 3, v23
    s_mov_b32 s31, {WS_STATS}
    buffer_load_dwordx2 v[32:33], v22, s[{SWS}:{SWS+3}], s31 offen
    buffer_load_dwordx2 v[34:35], v23, s[{SWS}:{SWS+3}], s31 offen""")
    a(f"""v_subrev_u32 v36, 2, v20
    s_cmp_eq_u32 s{sB}, 0
    s_cbranch_scc0 {L}_nc0
    buffer_load_ushort v37, v36, s[{SX}:{SX+3}], 0 offen""")
    a.label(f"{L}_nc0")
    stamp(a, 1)
    T, vFE, vTH, vDL, vC2 = 40, 56, 57, 58, 60
    GC, GS = 64, 72
    a(f"""s_lshl_b32 s29, s{sWv}, 4
    v_add_u32 v{vFE}, s29, v{vN}
    v_cvt_f32_u32 v{vFE}, v{vFE}
    v_mul_f32 v{vDL}, {fl(1/64)}, v{vFE}
    v_cos_f32 v{vC2}, v{vDL}
    v_cvt_f32_u32 v62, v{vG}
    v_mul_f32 v62, 4.0, v62
    v_mul_f32 v{vTH}, v62, v{vDL}
    v_add_f32 v{vC2}, v{vC2}, v{vC2}
    v_and_b32 v63, 1, v{vN}
    v_mul_u32_u24 v63, 0x8000, v63
    v_lshlrev_b32 v61, 16, v63
    v_or_b32 v63, v63, v61
    v_mov_b32 v59, 0x80008000""")
    cheb_group(a, T, vTH, vDL, vC2, 4, GC, GS)
    a(f"""v_add_f32 v62, {fl(16.0)}, v62
    v_mul_f32 v{vTH}, v62, v{vDL}""")
    cheb_group(a, T, vTH, vDL, vC2, 4, GC + 2, GS + 2)
    for i in range(4):
        a(f"v_xor_b32 v{GS+i}, v{GS+i}, v59")
    for i in range(4):
        a(f"v_xor_b32 v{GC+4+i}, v{GC+i}, v63")
        a(f"v_xor_b32 v{GS+4+i}, v{GS+i}, v63")
    stamp(a, 2)
    if moe:
        a(f"""s_waitcnt lgkmcnt(0)
        s_and_b32 s29, s44, 31
        s_sub_u32 s30, 2048, s44
        s_and_b32 s30, s30, 31
        s_cmp_eq_u32 s29, s{sT1}
        s_cbranch_scc1 {L}_own
        s_cmp_eq_u32 s30, s{sT1}
        s_cbranch_scc1 {L}_own""")
        p2tail(a, L + "n", False, locals())
        a("s_endpgm" if not P2_FALL else f"s_branch {L}_end")
        a.label(f"{L}_own")
        p2tail(a, L + "o", True, locals())
        a.label(f"{L}_end")
    else:
        p2tail(a, L, False, locals())

P2_FALL = True
def p2tail(a, L, own, E):
    SX, SO, SWS, sT1, sB, sWv = E["SX"], E["SO"], E["SWS"], E["sT1"], E["sB"], E["sWv"]
    vL, vN, vG, vT, vTM, GC, GS = E["vL"], E["vN"], E["vG"], E["vT"], E["vTM"], E["GC"], E["GS"]
    NO = 0
    YB = 8448
    if own:
        NO = 11
        SP = 48
        a(f"""s_add_u32 s48, s8, {WS_PART}
        s_addc_u32 s49, s9, 0
        s_mov_b32 s50, {144*2560}
        s_mov_b32 s51, 0x00020000
        v_lshrrev_b32 v128, 3, v0
        v_mul_u32_u24 v128, 2560, v128
        v_and_b32 v129, 7, v0
        v_lshlrev_b32 v129, 4, v129
        v_add_u32 v128, v128, v129
        s_lshl_b32 s29, s{sB}, 7
        s_sub_u32 s30, {(544+64)*4}, s29
        s_add_u32 s29, s29, 128""")
        for k in range(5):
            a(f"buffer_load_dwordx4 v[{132+4*k}:{135+4*k}], v128, s[48:51], s29 offen")
            a(f"buffer_load_dwordx4 v[{152+4*k}:{155+4*k}], v128, s[48:51], s30 offen")
            if k < 4: a(f"""s_add_u32 s29, s29, {32*2560}
            s_add_u32 s30, s30, {32*2560}""")
        a(f"""v_mov_b32 v172, 0
        s_mul_i32 s29, s{sWv}, {36*2560}
        s_add_u32 s29, s29, {31*4}
        v_mul_u32_u24 v130, 2560, v{vL}
        s_cmp_eq_u32 s{sB}, 0
        s_cselect_b32 s30, 36, 0
        v_cmp_gt_u32 vcc, s30, v{vL}
        s_and_saveexec_b64 s[52:53], vcc
        buffer_load_dword v172, v130, s[48:51], s29 offen
        s_mov_b64 exec, s[52:53]
        v_lshlrev_b32 v131, 2, v0
        v_mov_b32 v173, 0
        v_cmp_gt_u32 vcc, 80, v0
        s_and_saveexec_b64 s[52:53], vcc
        ds_write_b32 v131, v173 offset:{YB}
        s_mov_b64 exec, s[52:53]""")
    a(f"""s_cmp_eq_u32 s{sB}, 0
    s_cbranch_scc1 {L}_w5
    s_waitcnt vmcnt({4+NO})
    s_branch {L}_w
    """)
    a.label(f"{L}_w5")
    a(f"s_waitcnt vmcnt({5+NO})")
    a.label(f"{L}_w")
    a(f"""ds_write_b64 v4, v[8:9]
    ds_write_b64 v4, v[10:11] offset:2048
    ds_write_b64 v4, v[12:13] offset:1024
    ds_write_b64 v4, v[14:15] offset:{1024+2048}
    s_waitcnt lgkmcnt(0)
    s_barrier
    v_lshlrev_b32 v4, 3, v{vL}""")
    stamp(a, 3)
    AF = lambda p, ri, st: 80 + ((p*2 + ri)*2 + st)*4
    for st in range(2):
        for p in range(2):
            for ri in range(2):
                base = p*4224 + ri*2048 + st*1024
                r = AF(p, ri, st)
                a(f"ds_read_b64_tr_b16 v[{r}:{r+1}], v4 offset:{base}")
                a(f"ds_read_b64_tr_b16 v[{r+2}:{r+3}], v4 offset:{base+512}")
    ACC = 112
    for st in range(2):
        a(f"s_waitcnt lgkmcnt({8 if st == 0 else 0})")
        for p in range(2):
            acc = ACC + 4*p
            c = "0" if st == 0 else f"v[{acc}:{acc+3}]"
            a(f"v_mfma_f32_16x16x32_bf16 v[{acc}:{acc+3}], v[{AF(p,0,st)}:{AF(p,0,st)+3}], v[{GC+4*st}:{GC+4*st+3}], {c}")
        for p in range(2):
            acc = ACC + 4*p
            a(f"v_mfma_f32_16x16x32_bf16 v[{acc}:{acc+3}], v[{AF(p,1,st)}:{AF(p,1,st)+3}], v[{GS+4*st}:{GS+4*st+3}], v[{acc}:{acc+3}]")
    stamp(a, 4)
    a("s_waitcnt vmcnt(0)")
    stamp(a, 5)
    if own:
        for k in range(1, 5):
            for h in range(2):
                a(f"v_pk_add_f32 v[{132+2*h}:{133+2*h}], v[{132+2*h}:{133+2*h}], v[{132+4*k+2*h}:{133+4*k+2*h}]")
                a(f"v_pk_add_f32 v[{152+2*h}:{153+2*h}], v[{152+2*h}:{153+2*h}], v[{152+4*k+2*h}:{153+4*k+2*h}]")
        R8 = [132, 133, 134, 135, 152, 153, 154, 155]
        for r in R8: a(f"v_add_f32 v{r}, v{r}, v{r} row_ror:8 row_mask:0xf bank_mask:0xf")
        for m in ("quad_perm:[1,0,3,2]", "quad_perm:[2,3,0,1]", "row_half_mirror", "row_mirror"):
            a(f"v_add_f32 v172, v172, v172 {m} row_mask:0xf bank_mask:0xf")
        reduce_hi(a, R8 + [172], list(range(136, 145)))
        a(f"""v_lshlrev_b32 v131, 4, v{vL}
        s_mov_b64 s[52:53], exec
        s_mov_b64 exec, 0xff""")
        for j in range(4):
            a(f"ds_add_f32 v131, v{132+j} offset:{YB+4*j}")
            a(f"ds_add_f32 v131, v{152+j} offset:{YB+128+4*j}")
        a(f"""s_mov_b64 exec, 1
        ds_add_f32 v131, v172 offset:{YB+256}
        s_mov_b64 exec, s[52:53]
        v_lshlrev_b32 v131, 5, v{vG}
        v_sub_u32 v130, 96, v131
        v_mov_b32 v129, 0
        v_mov_b32 v173, s45
        v_mul_f32 v173, {fl(-1.4426950408889634)}, v173
        v_exp_f32 v173, v173
        v_add_f32 v173, 1.0, v173
        v_rcp_f32 v173, v173
        v_cmp_eq_u32 vcc, s44, v{vT}
        v_cndmask_b32 v174, 0, v173, vcc
        v_cmp_eq_u32 vcc, s44, v{vTM}
        v_cndmask_b32 v175, 0, v173, vcc
        s_waitcnt lgkmcnt(0)
        s_barrier
        ds_read_b128 v[132:135], v131 offset:{YB}
        ds_read_b128 v[136:139], v131 offset:{YB+16}
        ds_read_b128 v[152:155], v130 offset:{YB+128}
        ds_read_b128 v[156:159], v130 offset:{YB+128+16}
        ds_read_b32 v172, v129 offset:{YB+256}
        s_waitcnt lgkmcnt(0)""")
    a(f"""v_mul_f32 v32, v32, v33
    v_add_f32 v33, 1.0, v33
    v_mul_f32 v34, v34, v35
    v_add_f32 v35, 1.0, v35""")
    for p in range(2):
        for h in range(2):
            s_ = ACC + 4*p + 2*h
            a(f"v_pk_add_f32 v[{40+4*p+2*h}:{41+4*p+2*h}], v[{s_}:{s_+1}], v[32:33] op_sel_hi:[1,0] neg_lo:[0,1] neg_hi:[0,1]")
            a(f"v_pk_add_f32 v[{48+4*p+2*h}:{49+4*p+2*h}], v[{s_}:{s_+1}], v[34:35] op_sel_hi:[1,0] neg_lo:[0,1] neg_hi:[0,1]")
    if own:
        for k in range(8):
            a(f"v_fmac_f32 v{40+(k&1)*4+(k>>1)}, v{132+k}, v174")
            kk = 7 - k
            a(f"v_fmac_f32 v{48+(kk&1)*4+(kk>>1)}, v{152+k}, v175")
    for i in range(4):
        a(f"v_lshlrev_b32 v56, 16, v{24+i}")
        a(f"v_and_b32 v57, 0xffff0000, v{24+i}")
        a(f"v_fma_f32 v56, v56, v33, v{40+i}")
        a(f"v_fma_f32 v57, v57, v33, v{44+i}")
        a(f"v_cvt_pk_bf16_f32 v{64+i}, v56, v57")
    for i in range(4):
        a(f"v_lshlrev_b32 v58, 16, v{28+i}")
        a(f"v_and_b32 v59, 0xffff0000, v{28+i}")
        a(f"v_fma_f32 v58, v58, v35, v{48+4+3-i}")
        a(f"v_fma_f32 v59, v59, v35, v{48+3-i}")
        a(f"v_cvt_pk_bf16_f32 v{68+i}, v58, v59")
    a(f"""buffer_store_dwordx4 v[64:67], v20, s[{SO}:{SO+3}], 0 offen{OST}
    buffer_store_dwordx4 v[68:71], v21, s[{SO}:{SO+3}], 0 offen{OST}""")
    a(f"""s_cmp_eq_u32 s{sB}, 0
    s_cbranch_scc0 {L}_done
    v_lshlrev_b32 v37, 16, v37
    v_fma_f32 v37, v37, v33, -v32
    {"v_fmac_f32 v37, v172, v174" if own else ""}
    v_cvt_pk_bf16_f32 v37, v37, v37
    s_mov_b64 exec, 0xffff
    buffer_store_short v37, v36, s[{SO}:{SO+3}], 0 offen""")
    a.label(f"{L}_done")
```

```python
from asmlib import *
from k1 import *
from k2 import *
WS_SEL = 0x249000
PSTR = 2560
XB = 2048*1152

def dpp_red(a, op, regs):
    for m in ("quad_perm:[1,0,3,2]", "quad_perm:[2,3,0,1]", "row_half_mirror", "row_mirror"):
        for r in regs: a(f"{op} v{r}, v{r}, v{r} {m} row_mask:0xf bank_mask:0xf")
def hi_red(a, op, regs, tmps):
    for r, t in zip(regs, tmps): a(f"v_mov_b32 v{t}, v{r}")
    for r, t in zip(regs, tmps): a(f"v_permlane16_swap_b32 v{r}, v{t}")
    for r, t in zip(regs, tmps): a(f"{op} v{r}, v{r}, v{t}")
    for r, t in zip(regs, tmps): a(f"v_mov_b32 v{t}, v{r}")
    for r, t in zip(regs, tmps): a(f"v_permlane32_swap_b32 v{r}, v{t}")
    for r, t in zip(regs, tmps): a(f"{op} v{r}, v{r}, v{t}")

def statwg(a, L, sJ=3):
    SX, SW, SWS, SD = 12, 16, 20, 24
    srd(a, SX, 4, XB); srd(a, SW, 6, 1152)
    a(f"""v_lshrrev_b32 v1, 3, v0
    s_lshl_b32 s29, s{sJ}, 5
    v_add_u32 v1, s29, v1
    v_and_b32 v2, 7, v0
    v_lshlrev_b32 v2, 4, v2
    s_movk_i32 s30, 1152
    v_mul_lo_u32 v3, v1, s30
    v_add_u32 v3, v3, v2""")
    X = lambda i: 8 + 4*i
    W = lambda i: 44 + 4*i
    for i in range(9):
        a(f"buffer_load_dwordx4 v[{X(i)}:{X(i)+3}], v3, s[{SX}:{SX+3}], 0 offen offset:{128*i}")
        a(f"buffer_load_dwordx4 v[{W(i)}:{W(i)+3}], v2, s[{SW}:{SW+3}], 0 offen offset:{128*i}")
    stamp(a, 1)
    srd(a, SWS, 8, 0x400000); srd(a, SD, 42, 256)
    vS, vQ, vD, vW = 80, 81, 82, 83
    a(f"""v_mov_b32 v{vS}, 0
    v_mov_b32 v{vQ}, 0
    v_mov_b32 v{vD}, 0
    v_mov_b32 v{vW}, 0
    s_mov_b32 s35, 0x3f803f80
    v_lshrrev_b32 v4, 6, v0
    v_lshlrev_b32 v4, 2, v4""")
    for i in range(9):
        a(f"s_waitcnt vmcnt({16-2*i})")
        for j in range(4):
            a(f"v_dot2_f32_bf16 v{vS}, v{X(i)+j}, s35, v{vS}")
            a(f"v_dot2_f32_bf16 v{vQ}, v{X(i)+j}, v{X(i)+j}, v{vQ}")
            a(f"v_dot2_f32_bf16 v{vD}, v{X(i)+j}, v{W(i)+j}, v{vD}")
            a(f"v_dot2_f32_bf16 v{vW}, v{W(i)+j}, s35, v{vW}")
    stamp(a, 2)
    for m in ("quad_perm:[1,0,3,2]", "quad_perm:[2,3,0,1]", "row_half_mirror"):
        for r in (vS, vQ, vD, vW): a(f"v_add_f32 v{r}, v{r}, v{r} {m} row_mask:0xf bank_mask:0xf")
    a(f"""v_mul_f32 v84, {fl(1/576)}, v{vS}
    v_mul_f32 v{vQ}, {fl(1/576)}, v{vQ}
    v_fma_f32 v{vQ}, -v84, v84, v{vQ}
    v_max_f32 v{vQ}, 0, v{vQ}
    v_add_f32 v{vQ}, {fl(1e-5)}, v{vQ}
    v_rsq_f32 v85, v{vQ}
    v_fma_f32 v86, -v84, v{vW}, v{vD}
    v_mul_f32 v86, v86, v85
    v_mov_b32 v87, 0
    v_ashrrev_i32 v88, 31, v86
    v_or_b32 v88, 0x80000000, v88
    v_xor_b32 v88, v88, v86
    v_and_b32 v88, 0xfffff800, v88
    v_sub_u32 v89, 2047, v1
    v_or_b32 v88, v88, v89
    v_max_u32 v88, v88, v88 row_ror:8 row_mask:0xf bank_mask:0xf""")
    hi_red(a, "v_max_u32", [88], [89])
    a(f"""ds_write_b32 v4, v88
    v_lshlrev_b32 v90, 4, v1
    v_add_u32 v90, {WS_STATS}, v90
    v_and_b32 v91, 7, v0
    v_cmp_eq_u32 vcc, 0, v91
    s_waitcnt lgkmcnt(0)
    s_barrier
    v_mov_b32 v92, 0
    ds_read_b128 v[92:95], v92
    s_and_saveexec_b64 s[36:37], vcc
    buffer_store_dwordx4 v[84:87], v90, s[{SWS}:{SWS+3}], 0 offen
    s_mov_b64 exec, s[36:37]
    s_lshl_b32 s29, s{sJ}, 2
    v_mov_b32 v96, s29
    s_waitcnt lgkmcnt(0)
    v_max_u32 v92, v92, v93
    v_max_u32 v94, v94, v95
    v_max_u32 v92, v92, v94
    v_cmp_eq_u32 vcc, 0, v0
    s_and_saveexec_b64 s[36:37], vcc
    s_cbranch_execz {L}_nk
    buffer_store_dword v92, v96, s[{SD}:{SD+3}], 0 offen sc1""")
    a.label(f"{L}_nk")
    a("s_mov_b64 exec, s[36:37]")

def prefetch(a, sPJ, sWv, vL, dummy):
    a(f"""s_and_b32 s29, s{sPJ}, 7
    s_lshr_b32 s30, s{sPJ}, 3
    s_cmp_eq_u32 s{sWv}, 1
    s_cselect_b32 s44, s38, s36
    s_cselect_b32 s45, s39, s37
    s_cmp_eq_u32 s{sWv}, 2
    s_cselect_b32 s44, s40, s44
    s_cselect_b32 s45, s41, s45
    s_movk_i32 s31, 9216
    s_movk_i32 s32, 1152
    s_cselect_b32 s31, 1152, s31
    s_cselect_b32 s32, {576*1152}, s32
    s_mov_b32 s46, {576*9216}
    s_mov_b32 s47, 0x00020000
    s_mul_i32 s29, s29, s32
    s_mul_i32 s30, s30, 24
    s_mul_i32 s30, s30, s31
    s_add_u32 s29, s29, s30
    v_lshrrev_b32 v1, 3, v{vL}
    v_mul_lo_u32 v1, v1, s31
    v_and_b32 v2, 7, v{vL}
    v_lshl_add_u32 v1, v2, 4, v1
    s_lshl_b32 s31, s31, 3""")
    for g in range(3):
        for seg in range(9):
            a(f"buffer_load_dwordx4 v[{dummy}:{dummy+3}], v1, s[44:47], s29 offen offset:{128*seg}{PFMOD}")
        if g < 2: a("s_add_u32 s29, s29, s31")
PFMOD = ""
PST = ""
MIDDOWN = False
GUMOD = ""
DNMOD = ""

def moe2(a, L, sU, sPJ, late_down=True, pf=True):
    SX, SD, SWS, SDB = 12, 16, 20, 48
    sWv, sIdx = 26, 27
    a(f"""v_lshrrev_b32 v5, 6, v0
    v_readfirstlane_b32 s{sWv}, v5
    v_and_b32 v5, 63, v0
    s_cmp_eq_u32 s{sWv}, 3
    s_cbranch_scc1 {L}_help""")
    vL, vN, vG = 5, 6, 7
    if pf: prefetch(a, sPJ, sWv, vL, 216)
    stamp(a, 1)
    srd(a, SD, 40, 4608*1152); srd(a, SWS, 8, 0x400000)
    a(f"""v_and_b32 v{vN}, 15, v{vL}
    v_lshrrev_b32 v{vG}, 4, v{vL}
    v_and_b32 v1, 3, v{vN}
    v_lshrrev_b32 v2, 2, v{vN}
    v_and_b32 v2, 1, v2
    v_lshrrev_b32 v3, 3, v{vN}
    v_lshlrev_b32 v4, 2, v2
    v_add_u32 v4, v4, v{vG}
    s_mul_i32 s29, s{sWv}, 192
    v_add_u32 v4, s29, v4
    s_movk_i32 s30, 9216
    v_mul_lo_u32 v8, v4, s30
    v_lshlrev_b32 v9, 4, v1
    s_lshl_b32 s31, s{sU}, 6
    v_add3_u32 v8, v8, v9, s31
    v_cmp_eq_u32 vcc, 1, v3
    v_mov_b32 v10, s36
    v_mov_b32 v11, s37
    v_mov_b32 v12, s38
    v_mov_b32 v13, s39
    v_cndmask_b32 v10, v10, v12, vcc
    v_cndmask_b32 v11, v11, v13, vcc
    v_add_co_u32 v10, vcc, v10, v8
    v_addc_co_u32 v11, vcc, 0, v11, vcc
    s_mov_b32 s29, 73728""")
    WG = 32
    for i in range(24):
        a(f"global_load_dwordx4 v[{WG+4*i}:{WG+4*i+3}], v[10:11], off{GUMOD}")
        if i < 23:
            a(f"""v_add_co_u32 v10, vcc, s29, v10
            v_addc_co_u32 v11, vcc, 0, v11, vcc""")
    WD = 128
    a(f"""v_lshrrev_b32 v1, 3, v{vN}
    v_and_b32 v2, 7, v{vN}
    v_lshlrev_b32 v1, 2, v1
    v_add_u32 v1, v1, v{vG}
    s_lshl_b32 s29, s{sU}, 5
    v_add_u32 v1, s29, v1
    s_movk_i32 s30, 1152
    v_mul_lo_u32 v1, v1, s30
    v_lshlrev_b32 v2, 4, v2
    s_mul_i32 s31, s{sWv}, 384
    v_add3_u32 v15, v1, v2, s31""")
    def down_loads():
        for k in range(3):
            for fg in range(4):
                a(f"s_mov_b32 s29, {fg*8*1152}")
                a(f"buffer_load_dwordx4 v[{WD+16*k+4*fg}:{WD+16*k+4*fg+3}], v15, s[{SD}:{SD+3}], s29 offen offset:{128*k}{DNMOD}")
    if not late_down: down_loads()
    MK = 22
    a(f"""v_and_b32 v1, 7, v{vN}
    v_and_b32 v2, 1, v1
    v_lshrrev_b32 v1, 1, v1
    v_mov_b32 v3, 0xffff
    v_mov_b32 v4, 0xffff0000
    v_cmp_eq_u32 vcc, 1, v2
    v_cndmask_b32 v3, v3, v4, vcc""")
    for i in range(4):
        a(f"""v_cmp_eq_u32 vcc, {i}, v1
        v_cndmask_b32 v{MK+i}, 0, v3, vcc""")
    a(f"""v_lshrrev_b32 v1, 3, v{vN}
    v_lshlrev_b32 v1, 2, v1
    v_add_u32 v1, v1, v{vG}
    v_lshlrev_b32 v1, 2, v1
    s_mul_i32 s29, s{sWv}, 768
    v_add_u32 v26, s29, v1
    s_lshl_b32 s29, s{sWv}, 7
    s_add_u32 s29, s29, 6144
    v_add_u32 v27, s29, v1""")
    stamp(a, 2)
    if MIDDOWN:
        a("s_barrier")
        down_loads()
    a("s_barrier")
    stamp(a, 3)
    XS = 176
    for i in range(24): a(f"ds_read_b32 v{XS+i}, v26 offset:{32*i}")
    if late_down and not MIDDOWN: down_loads()
    ACC = [208, 212]
    AB = [200, 204]
    a("s_waitcnt lgkmcnt(0)")
    for i in range(24):
        ab = AB[i & 1]; acc = ACC[i & 1]
        if i % 4 == 0: a(f"s_waitcnt vmcnt({12 + 24 - (i+4)})")
        for j in range(4): a(f"v_and_b32 v{ab+j}, v{XS+i}, v{MK+j}")
        c = "0" if i < 2 else f"v[{acc}:{acc+3}]"
        a(f"v_mfma_f32_16x16x32_bf16 v[{acc}:{acc+3}], v[{ab}:{ab+3}], v[{WG+4*i}:{WG+4*i+3}], {c}")
    a(f"""v_pk_add_f32 v[208:209], v[208:209], v[212:213]
    v_pk_add_f32 v[210:211], v[210:211], v[214:215]""")
    stamp(a, 4)
    a(f"""v_lshrrev_b32 v1, 1, v{vG}
    v_lshrrev_b32 v2, 2, v{vN}
    v_and_b32 v2, 1, v2
    v_cmp_eq_u32 vcc, v1, v2
    v_lshlrev_b32 v1, 8, v1
    v_lshrrev_b32 v3, 3, v{vN}
    v_lshlrev_b32 v3, 7, v3
    v_and_b32 v4, 3, v{vN}
    v_lshlrev_b32 v4, 5, v4
    v_add3_u32 v1, v1, v3, v4
    v_and_b32 v3, 1, v{vG}
    v_lshlrev_b32 v3, 4, v3
    s_lshl_b32 s29, s{sWv}, 9
    v_add3_u32 v1, v1, v3, s29
    s_and_saveexec_b64 s[30:31], vcc
    ds_write_b128 v1, v[208:211] offset:4096
    s_mov_b64 exec, s[30:31]
    v_and_b32 v1, 31, v{vL}
    v_lshrrev_b32 v2, 5, v{vL}
    v_lshlrev_b32 v1, 2, v1
    v_lshlrev_b32 v2, 7, v2
    v_add_u32 v1, v1, v2
    s_waitcnt lgkmcnt(0)
    s_barrier""")
    H = 176
    for k in range(6): a(f"ds_read_b32 v{H+k}, v1 offset:{4096+256*k}")
    a("s_waitcnt lgkmcnt(0)")
    a(f"""v_add_f32 v{H}, v{H}, v{H+1}
    v_add_f32 v{H+2}, v{H+2}, v{H+3}
    v_add_f32 v{H+4}, v{H+4}, v{H+5}
    v_add_f32 v{H}, v{H}, v{H+2}
    v_add_f32 v{H}, v{H}, v{H+4}
    v_mov_b32 v{H+1}, v{H}
    v_permlane32_swap_b32 v{H}, v{H+1}""")
    a(f"""v_cvt_pk_bf16_f32 v{H}, v{H}, v{H+1}
    v_and_b32 v{H+1}, 0xffff0000, v{H}
    v_lshlrev_b32 v{H}, 16, v{H}
    v_mul_f32 v{H+2}, {fl(-1.4426950408889634)}, v{H}
    v_exp_f32 v{H+2}, v{H+2}
    v_add_f32 v{H+2}, 1.0, v{H+2}
    v_rcp_f32 v{H+2}, v{H+2}
    v_mul_f32 v{H+2}, v{H}, v{H+2}
    v_cvt_pk_bf16_f32 v{H+2}, v{H+2}, v{H+2}
    v_lshlrev_b32 v{H+2}, 16, v{H+2}
    v_mul_f32 v{H+2}, v{H+2}, v{H+1}
    v_cvt_pk_bf16_f32 v{H+2}, v{H+2}, v{H+2}""")
    a(f"""v_and_b32 v1, 31, v{vL}
    v_lshlrev_b32 v1, 2, v1
    s_lshl_b32 s29, s{sWv}, 7
    s_add_u32 s29, s29, 6144
    v_add_u32 v1, s29, v1
    ds_write_b32 v1, v{H+2}
    s_waitcnt lgkmcnt(0)""")
    for fg in range(4): a(f"ds_read_b32 v{H+4+fg}, v27 offset:{32*fg}")
    a("s_waitcnt lgkmcnt(0)")
    stamp(a, 5)
    AD = 200
    for fg in range(4):
        for j in range(4): a(f"v_and_b32 v{AD+4*fg+j}, v{H+4+fg}, v{MK+j}")
    DA = 220
    a("s_waitcnt vmcnt(0)")
    for fg in range(4):
        for k in range(3):
            acc = DA + 4*k
            c = "0" if fg == 0 else f"v[{acc}:{acc+3}]"
            a(f"v_mfma_f32_16x16x32_bf16 v[{acc}:{acc+3}], v[{AD+4*fg}:{AD+4*fg+3}], v[{WD+16*k+4*fg}:{WD+16*k+4*fg+3}], {c}")
    a(f"""v_cmp_gt_u32 vcc, 8, v{vN}
    v_cmp_gt_u32 s[34:35], 32, v{vL}
    s_and_b64 s[34:35], s[34:35], vcc
    v_lshlrev_b32 v3, 5, v{vN}
    v_and_b32 v4, 1, v{vG}
    v_lshlrev_b32 v4, 4, v4
    v_add_u32 v1, v3, v4
    s_mul_i32 s30, s{sWv}, 768
    v_add_u32 v1, s30, v1
    s_mul_i32 s29, s{sU}, {PSTR}
    s_add_u32 s29, s29, {WS_PART}""")
    for k in range(3):
        a(f"""v_add_u32 v{2+k}, {256*k}, v1
        v_cmp_gt_u32 vcc, {288*4}, v{2+k}
        v_cndmask_b32 v3{k}, 64*4, 31*4, vcc""".replace("64*4", "s31").replace("31*4", "v29") if False else f"""v_add_u32 v{28+k}, {256*k}, v1""")
    a(f"""v_mov_b32 v2, {64*4}
    v_mov_b32 v3, {31*4}""")
    for k in range(3):
        a(f"""v_cmp_gt_u32 vcc, {288*4}, v{28+k}
        v_cndmask_b32 v4, v2, v3, vcc
        v_add_u32 v{28+k}, v4, v{28+k}""")
    for r in range(12): a(f"v_mov_b32 v{H+r}, v{DA+r}")
    for r in range(12): a(f"v_permlane32_swap_b32 v{DA+r}, v{H+r}")
    for r in range(12): a(f"v_add_f32 v{DA+r}, v{H+r}, v{DA+r} row_ror:8 row_mask:0xf bank_mask:0xf")
    a("s_mov_b64 exec, s[34:35]")
    for k in range(3):
        a(f"buffer_store_dwordx4 v[{DA+4*k}:{DA+4*k+3}], v{28+k}, s[{SWS}:{SWS+3}], s29 offen{PST}")
    a(f"""s_cmp_eq_u32 s{sWv}, 1
    s_cbranch_scc0 {L}_done
    s_mov_b64 exec, 16
    v_mov_b32 v1, {319*4}
    buffer_store_dwordx4 v[{DA+4}:{DA+7}], v1, s[{SWS}:{SWS+3}], s29 offen{PST}""")
    a(f"s_branch {L}_done")
    a.label(f"{L}_help")
    srd(a, SDB, 42, 256); srd(a, SX, 4, XB); srd(a, SWS, 8, 0x400000)
    a(f"""v_lshlrev_b32 v1, 2, v5
    s_mov_b32 s30, 20000
    s_mov_b32 s35, 0x3f803f80
    v_mov_b32 v20, 0
    v_mov_b32 v21, 0
    v_mov_b32 v12, 0
    v_lshlrev_b32 v2, 3, v5""")
    a.label(f"{L}_poll")
    a(f"""buffer_load_dword v16, v1, s[{SDB}:{SDB+3}], 0 offen sc1
    s_waitcnt vmcnt(0)
    v_cmp_eq_u32 vcc, 0, v16
    s_cbranch_vccz {L}_got
    s_sub_u32 s30, s30, 1
    s_cmp_eq_u32 s30, 0
    s_cbranch_scc1 {L}_got
    s_sleep 1
    s_branch {L}_poll""")
    a.label(f"{L}_got")
    stamp(a, 1)
    dpp_red(a, "v_max_u32", [16]); hi_red(a, "v_max_u32", [16], [17])
    a(f"""v_readfirstlane_b32 s31, v16
    s_and_b32 s{sIdx}, s31, 0x7ff
    s_sub_u32 s{sIdx}, 2047, s{sIdx}
    s_mul_i32 s29, s{sIdx}, 1152""")
    for k in range(4): a(f"buffer_load_dword v{8+k}, v1, s[{SX}:{SX+3}], s29 offen offset:{256*k}")
    a(f"""s_mov_b32 s50, -1
    s_mov_b32 s51, 0
    s_mov_b64 exec, s[50:51]
    buffer_load_dword v12, v1, s[{SX}:{SX+3}], s29 offen offset:1024
    s_mov_b64 exec, -1
    {"s_barrier" if MIDDOWN else ""}
    s_and_b32 s32, s31, 0xfffff800
    s_xor_b32 s33, s32, 0x80000000
    s_not_b32 s34, s31
    s_or_b32 s34, s34, 0x400
    s_and_b32 s34, s34, 0xfffffc00
    s_cmp_lt_i32 s31, 0
    s_cselect_b32 s32, s33, s34
    v_mov_b32 v18, s{sIdx}
    v_mov_b32 v19, s32
    v_mov_b32 v3, {WS_SEL}
    s_waitcnt vmcnt(0)""")
    stamp(a, 2)
    for k in range(5):
        a(f"v_dot2_f32_bf16 v20, v{8+k}, s35, v20")
        a(f"v_dot2_f32_bf16 v21, v{8+k}, v{8+k}, v21")
    dpp_red(a, "v_add_f32", [20, 21]); hi_red(a, "v_add_f32", [20, 21], [22, 23])
    a(f"""v_mul_f32 v20, {fl(1/576)}, v20
    v_mul_f32 v21, {fl(1/576)}, v21
    v_fma_f32 v21, -v20, v20, v21
    v_max_f32 v21, 0, v21
    v_add_f32 v21, {fl(1e-5)}, v21
    v_rsq_f32 v21, v21""")
    for k in range(5):
        a(f"""v_lshlrev_b32 v24, 16, v{8+k}
        v_and_b32 v25, 0xffff0000, v{8+k}
        v_sub_f32 v24, v24, v20
        v_sub_f32 v25, v25, v20
        v_mul_f32 v24, v24, v21
        v_mul_f32 v25, v25, v21
        v_cvt_pk_bf16_f32 v{28+2*k}, v24, v24
        v_cvt_pk_bf16_f32 v{29+2*k}, v25, v25""")
        if k == 4: a("s_mov_b64 exec, s[50:51]")
        a(f"ds_write_b64 v2, v[{28+2*k}:{29+2*k}] offset:{512*k}")
    a(f"""s_mov_b64 exec, -1
    s_waitcnt lgkmcnt(0)
    s_barrier""")
    stamp(a, 3)
    a(f"""s_cmp_eq_u32 s{sU}, 0
    s_cbranch_scc0 {L}_done
    s_mov_b64 exec, 1
    buffer_store_dwordx2 v[18:19], v3, s[{SWS}:{SWS+3}], 0 offen
    s_mov_b64 exec, -1""")
    a.label(f"{L}_done")
```

```python
import sys
sys.path.insert(0, "gen")
from asmlib import *
import k1 as K1M
import k3 as K3M
import k2 as K2M
from k1 import *
from k2 import *
from k3 import *
NAME = "parallel_sum__spectral_fnet__moe_arch_mod__prompt"
HDR = open("cdna_kernels/" + NAME + ".s.ref").read().split("; Override launch")[0]
opts = set(sys.argv[2:])
if "stamps" in opts: K1M.STAMPS = True
if "hwid" in opts: K1M.HWID = True
if "quiet" in opts: K1M.QUIET = True
if "xlds" in opts: K1M.XLDS = True
if "midown" in opts: K3M.MIDDOWN = True
if "pfnt" in opts: K3M.PFMOD = " nt"
def desc(name, vgpr, sgpr=102):
    acc = (vgpr + 3)//4*4
    return f""".amdhsa_kernel {name}
  .amdhsa_next_free_vgpr {vgpr}
  .amdhsa_next_free_sgpr {sgpr}
  .amdhsa_accum_offset {acc}
  .amdhsa_group_segment_fixed_size 0
  .amdhsa_kernarg_size 104
  .amdhsa_user_sgpr_count 2
  .amdhsa_user_sgpr_kernarg_segment_ptr 1
  .amdhsa_system_sgpr_workgroup_id_x 1
.end_amdhsa_kernel
"""
def kern(name, body):
    return f""".globl {name}
.p2align 8
.type {name},@function
{name}:
{body}
    s_endpgm
"""
def prefetch2(a, sPJ, sWv, vL, dummy):
    a(f"""s_and_b32 s29, s{sPJ}, 7
    s_lshr_b32 s30, s{sPJ}, 3
    s_cmp_eq_u32 s{sWv}, 1
    s_cselect_b32 s44, s38, s36
    s_cselect_b32 s45, s39, s37
    s_cmp_ge_u32 s{sWv}, 2
    s_cselect_b32 s44, s40, s44
    s_cselect_b32 s45, s41, s45
    s_movk_i32 s31, 9216
    s_movk_i32 s32, 1152
    s_cselect_b32 s31, 1152, s31
    s_cselect_b32 s32, {576*1152}, s32
    s_mov_b32 s46, {576*9216}
    s_mov_b32 s47, 0x00020000
    s_mul_i32 s29, s29, s32
    s_lshr_b32 s33, s30, 2
    s_mul_i32 s33, s33, 192
    s_and_b32 s34, s30, 3
    s_mul_i32 s34, s34, 24
    s_add_u32 s33, s33, s34
    s_add_u32 s33, s33, {PFROW0}
    s_lshl_b32 s34, s30, 1
    s_add_u32 s34, s34, s{sWv}
    s_sub_u32 s34, s34, 2
    s_mul_i32 s34, s34, 24
    s_cmp_ge_u32 s{sWv}, 2
    s_cselect_b32 s30, s34, s33
    s_mul_i32 s30, s30, s31
    s_add_u32 s29, s29, s30
    v_lshrrev_b32 v1, 3, v{vL}
    v_mul_lo_u32 v1, v1, s31
    v_and_b32 v2, 7, v{vL}
    v_lshl_add_u32 v1, v2, 4, v1
    s_lshl_b32 s31, s31, 3""")
    for g in range(3):
        for seg in range(9):
            a(f"buffer_load_dwordx4 v[{dummy}:{dummy+3}], v1, s[44:47], s29 offen offset:{128*seg}{K3M.PFMOD}")
        if g < 2: a("s_add_u32 s29, s29, s31")
PFROW0 = 96
for o in opts:
    if o.startswith("gu="): K3M.GUMOD = " " + o[3:]
    if o.startswith("dn="): K3M.DNMOD = " " + o[3:]
    if o.startswith("vst="): K1M.VST = " " + o[4:].replace("+", " ")
    if o.startswith("pst="): K3M.PST = " " + o[4:].replace("+", " ")
    if o.startswith("ost="): K2M.OST = " " + o[4:].replace("+", " ")
    if o == "swap": K2M.SWAP = True
    if o == "wlds": K1M.WLDS = True
    if o.startswith("pfrow="): PFROW0 = int(o[6:])
NPF = 96 if "pf2" in opts else 0
PFFIRST = "pffirst" in opts
def k1():
    a = Asm()
    a("""s_cmp_ge_u32 s2, 256
    s_cbranch_scc1 k1_aux
    s_load_dwordx2 s[4:5], s[0:1], 0
    s_load_dwordx2 s[6:7], s[0:1], 48
    s_load_dwordx2 s[42:43], s[0:1], 88
    s_load_dwordx2 s[8:9], s[0:1], 96""")
    if "noprio" not in opts: a("s_setprio 3")
    a("s_waitcnt lgkmcnt(0)")
    stamp_init(a); stamp(a, 0)
    phase1(a, "k1", stat=True)
    stamp_flush(a, 0)
    a("s_endpgm")
    a.label("k1_aux")
    mo0 = 256 + (NPF if PFFIRST else 0)
    pf0 = 256 if PFFIRST else 256 + 144
    a(f"""s_cmp_ge_u32 s2, {256+144+NPF}
    s_cbranch_scc1 k1_end
    s_load_dwordx2 s[4:5], s[0:1], 0
    s_load_dwordx4 s[36:39], s[0:1], 56
    s_load_dwordx2 s[40:41], s[0:1], 72
    s_load_dwordx2 s[42:43], s[0:1], 88
    s_load_dwordx2 s[8:9], s[0:1], 96""")
    if NPF:
        a(f"""s_sub_u32 s28, s2, {pf0}
        s_cmp_lt_u32 s28, {NPF}
        s_cbranch_scc0 k1_moe
        v_lshrrev_b32 v5, 6, v0
        v_readfirstlane_b32 s26, v5
        v_and_b32 v5, 63, v0
        s_waitcnt lgkmcnt(0)""")
        stamp_init(a); stamp(a, 0)
        prefetch2(a, 28, 26, 5, 8)
        stamp(a, 1)
        a("s_waitcnt vmcnt(0)")
        stamp_flush(a, 0)
        a("s_endpgm")
    a.label("k1_moe")
    a(f"""s_sub_u32 s3, s2, {mo0}
    s_and_b32 s29, s3, 7
    s_mul_i32 s29, s29, 18
    s_lshr_b32 s3, s3, 3
    s_add_u32 s3, s3, s29
    s_waitcnt lgkmcnt(0)""")
    stamp_init(a); stamp(a, 0)
    moe2(a, "k1m", 3, 28, late_down=("earlydown" not in opts), pf=False)
    if K1M.STAMPS:
        a("""v_lshrrev_b32 v1, 6, v0
        s_nop 1
        v_readfirstlane_b32 s97, v1
        s_cmp_eq_u32 s97, 3
        s_cbranch_scc1 k1_hst""")
        stamp_flush(a, 0)
        a("s_endpgm")
        a.label("k1_hst")
        a(f"s_add_u32 s97, s2, {512-mo0}")
        stamp_flush(a, 0, swg="s97", tid=192)
    a.label("k1_end")
    return a.text()
def k2():
    a = Asm()
    a("""s_cmp_ge_u32 s2, 288
    s_cbranch_scc1 k2_end
    s_load_dwordx2 s[4:5], s[0:1], 0
    s_load_dwordx2 s[10:11], s[0:1], 80
    s_load_dwordx2 s[8:9], s[0:1], 96
    s_mov_b32 s3, s2
    s_waitcnt lgkmcnt(0)""")
    stamp_init(a); stamp(a, 0)
    phase2(a, "k2p", 3, moe=True)
    stamp_flush(a, 2)
    a.label("k2_end")
    return a.text()
launch = f"""; @launch kernel=k1_kernel grid=({256+144+NPF},1,1) block=(256,1,1) lds={(55360 + (4608 if K1M.WLDS else 0)) if K1M.XLDS else 18496}
; @launch kernel=k2_kernel grid=(288,1,1) block=(256,1,1) lds=9216
"""
src = HDR + launch + """.amdgcn_target "amdgcn-amd-amdhsa--gfx950"
.text
""" + kern("k1_kernel", k1()) + kern("k2_kernel", k2())
src += """.section .rodata,"a"
.p2align 6
""" + desc("k1_kernel", 256) + ".p2align 6\n" + desc("k2_kernel", 256 if K1M.STAMPS else 176)
open(sys.argv[1], "w").write(src)
print("written", sys.argv[1], len(src))
```

```python
from asmlib import *
from k1 import *
OUTBYTES = XBYTES
OST = ""
SWAP = False
SWAP2 = False

def phase2(a, L, sU=2, moe=False):
    SX, SO, SWS = 12, 16, 20
    sT1, sB, sWv = 24, 25, 26
    if moe: a("""s_mov_b32 s46, 0x249000
    s_load_dwordx2 s[44:45], s[8:9], s46""")
    srd(a, SX, 4, XBYTES); srd(a, SO, 10, OUTBYTES); srd(a, SWS, 8, 0x400000)
    a(f"""s_and_b32 s29, s{sU}, 31
    s_lshr_b32 s{sB}, s{sU}, 5
    s_xor_b32 s30, s{sB}, 1
    s_cmp_lt_u32 s{sB}, 2
    s_cselect_b32 s{sB}, s30, s{sB}
    s_xor_b32 s30, s29, 16
    s_cmp_eq_u32 s{sB}, 8
    s_cselect_b32 s29, s30, s29""")
    if SWAP and moe:
        hi = "s_cmp_eq_u32 s34, 1"
        a(f"""s_mov_b32 s34, 0
        s_mov_b32 s35, 12
        s_cmp_eq_u32 s{sB}, 8
        s_cselect_b32 s34, 1, s34
        s_cbranch_scc1 {L}_sw
        s_cmp_eq_u32 s{sB}, 4
        s_cbranch_scc1 {L}_sw""")
        if SWAP2: a(f"""s_mov_b32 s35, 6
        s_cmp_eq_u32 s{sB}, 1
        s_cselect_b32 s34, 1, s34
        s_cbranch_scc1 {L}_sw
        s_cmp_eq_u32 s{sB}, 5
        s_cbranch_scc1 {L}_sw""")
        a(f"s_branch {L}_nsw")
        a.label(f"{L}_sw")
        a(f"""s_xor_b32 s31, s29, 16
        s_cmp_eq_u32 s34, 1
        s_cselect_b32 s30, s29, s31
        s_and_b32 s31, s30, 7
        s_lshr_b32 s32, s30, 3
        s_lshl_b32 s31, s31, 1
        s_lshr_b32 s32, s32, 1
        s_add_u32 s31, s31, s32
        s_waitcnt lgkmcnt(0)
        s_and_b32 s32, s44, 31
        s_sub_u32 s33, 32, s32
        s_min_u32 s33, s32, s33
        s_cmp_eq_u32 s32, 16
        s_cselect_b32 s33, 0, s33
        s_cmp_eq_u32 s33, s31
        s_cbranch_scc0 {L}_nsw
        s_xor_b32 s29, s29, 16
        s_sub_u32 s{sB}, s35, s{sB}""")
        a.label(f"{L}_nsw")
    a(f"""s_and_b32 s30, s29, 7
    s_lshr_b32 s31, s29, 3
    s_lshl_b32 s30, s30, 1
    s_lshr_b32 s32, s31, 1
    s_add_u32 s30, s30, s32
    s_sub_u32 s32, 32, s30
    s_cmp_eq_u32 s30, 0
    s_cselect_b32 s32, 16, s32
    s_and_b32 s31, s31, 1
    s_cmp_eq_u32 s31, 1
    s_cselect_b32 s{sT1}, s32, s30
    v_lshrrev_b32 v5, 6, v0
    v_readfirstlane_b32 s{sWv}, v5
    v_and_b32 v5, 63, v0""")
    vL = 5
    a(f"""v_lshrrev_b32 v1, 3, v0
    v_and_b32 v2, 7, v0
    s_movk_i32 s29, 1152
    v_mul_lo_u32 v3, v1, s29
    v_lshlrev_b32 v4, 4, v2
    s_mul_i32 s30, s{sT1}, 73728
    s_lshl_b32 s31, s{sB}, 7
    s_add_u32 s30, s30, s31
    v_add3_u32 v3, v3, v4, s30
    buffer_load_dwordx4 v[8:11], v3, s[{SWS}:{SWS+3}], 0 offen
    s_mov_b32 s31, {32*1152}
    buffer_load_dwordx4 v[12:15], v3, s[{SWS}:{SWS+3}], s31 offen""")
    a(f"""v_lshrrev_b32 v4, 2, v2
    v_mul_u32_u24 v4, 4224, v4
    v_and_b32 v6, 3, v2
    v_lshlrev_b32 v6, 3, v6
    v_lshlrev_b32 v7, 5, v1
    v_add3_u32 v4, v4, v6, v7""")
    vN, vG, vT, vTM = 16, 17, 18, 19
    a(f"""v_and_b32 v{vN}, 15, v{vL}
    v_lshrrev_b32 v{vG}, 4, v{vL}
    s_lshl_b32 s29, s{sWv}, 4
    v_add_u32 v{vT}, s29, v{vN}
    v_lshlrev_b32 v{vT}, 5, v{vT}
    v_add_u32 v{vT}, s{sT1}, v{vT}
    v_sub_u32 v{vTM}, 2048, v{vT}
    v_and_b32 v{vTM}, 2047, v{vTM}
    s_movk_i32 s29, 1152
    v_mul_lo_u32 v20, v{vT}, s29
    v_mul_lo_u32 v21, v{vTM}, s29
    v_lshlrev_b32 v22, 4, v{vG}
    s_lshl_b32 s30, s{sB}, 6
    s_add_u32 s31, s30, 2
    v_add3_u32 v20, v20, v22, s31
    s_sub_u32 s31, 1136, s30
    v_sub_u32 v21, v21, v22
    v_add_u32 v21, s31, v21
    buffer_load_dwordx4 v[24:27], v20, s[{SX}:{SX+3}], 0 offen
    buffer_load_dwordx4 v[28:31], v21, s[{SX}:{SX+3}], 0 offen
    v_and_b32 v22, 31, v{vT}
    v_lshrrev_b32 v23, 5, v{vT}
    v_lshl_add_u32 v22, v22, 6, v23
    v_lshlrev_b32 v22, 3, v22
    v_and_b32 v23, 31, v{vTM}
    v_lshrrev_b32 v36, 5, v{vTM}
    v_lshl_add_u32 v23, v23, 6, v36
    v_lshlrev_b32 v23, 3, v23
    s_mov_b32 s31, {WS_STATS}
    buffer_load_dwordx2 v[32:33], v22, s[{SWS}:{SWS+3}], s31 offen
    buffer_load_dwordx2 v[34:35], v23, s[{SWS}:{SWS+3}], s31 offen""")
    a(f"""v_subrev_u32 v36, 2, v20
    s_cmp_eq_u32 s{sB}, 0
    s_cbranch_scc0 {L}_nc0
    buffer_load_ushort v37, v36, s[{SX}:{SX+3}], 0 offen""")
    a.label(f"{L}_nc0")
    stamp(a, 1)
    T, vFE, vTH, vDL, vC2 = 40, 56, 57, 58, 60
    GC, GS = 64, 72
    a(f"""s_lshl_b32 s29, s{sWv}, 4
    v_add_u32 v{vFE}, s29, v{vN}
    v_cvt_f32_u32 v{vFE}, v{vFE}
    v_mul_f32 v{vDL}, {fl(1/64)}, v{vFE}
    v_cos_f32 v{vC2}, v{vDL}
    v_cvt_f32_u32 v62, v{vG}
    v_mul_f32 v62, 4.0, v62
    v_mul_f32 v{vTH}, v62, v{vDL}
    v_add_f32 v{vC2}, v{vC2}, v{vC2}
    v_and_b32 v63, 1, v{vN}
    v_mul_u32_u24 v63, 0x8000, v63
    v_lshlrev_b32 v61, 16, v63
    v_or_b32 v63, v63, v61
    v_mov_b32 v59, 0x80008000""")
    cheb_group(a, T, vTH, vDL, vC2, 4, GC, GS)
    a(f"""v_add_f32 v62, {fl(16.0)}, v62
    v_mul_f32 v{vTH}, v62, v{vDL}""")
    cheb_group(a, T, vTH, vDL, vC2, 4, GC + 2, GS + 2)
    for i in range(4):
        a(f"v_xor_b32 v{GS+i}, v{GS+i}, v59")
    for i in range(4):
        a(f"v_xor_b32 v{GC+4+i}, v{GC+i}, v63")
        a(f"v_xor_b32 v{GS+4+i}, v{GS+i}, v63")
    stamp(a, 2)
    if moe:
        a(f"""s_waitcnt lgkmcnt(0)
        s_and_b32 s29, s44, 31
        s_sub_u32 s30, 2048, s44
        s_and_b32 s30, s30, 31
        s_cmp_eq_u32 s29, s{sT1}
        s_cbranch_scc1 {L}_own
        s_cmp_eq_u32 s30, s{sT1}
        s_cbranch_scc1 {L}_own""")
        p2tail(a, L + "n", False, locals())
        a("s_endpgm" if not P2_FALL else f"s_branch {L}_end")
        a.label(f"{L}_own")
        p2tail(a, L + "o", True, locals())
        a.label(f"{L}_end")
    else:
        p2tail(a, L, False, locals())

P2_FALL = True
def p2tail(a, L, own, E):
    SX, SO, SWS, sT1, sB, sWv = E["SX"], E["SO"], E["SWS"], E["sT1"], E["sB"], E["sWv"]
    vL, vN, vG, vT, vTM, GC, GS = E["vL"], E["vN"], E["vG"], E["vT"], E["vTM"], E["GC"], E["GS"]
    NO = 0
    YB = 8448
    if own:
        NO = 11
        SP = 48
        a(f"""s_add_u32 s48, s8, {WS_PART}
        s_addc_u32 s49, s9, 0
        s_mov_b32 s50, {144*2560}
        s_mov_b32 s51, 0x00020000
        v_lshrrev_b32 v128, 3, v0
        v_mul_u32_u24 v128, 2560, v128
        v_and_b32 v129, 7, v0
        v_lshlrev_b32 v129, 4, v129
        v_add_u32 v128, v128, v129
        s_mov_b32 s56, s48
        s_mov_b32 s57, s49
        s_mov_b32 s59, 0x00020000
        s_and_b32 s29, s44, 31
        s_cmp_eq_u32 s29, s{sT1}
        s_cselect_b32 s50, {144*2560}, 0
        s_sub_u32 s30, 2048, s44
        s_and_b32 s30, s30, 31
        s_cmp_eq_u32 s30, s{sT1}
        s_cselect_b32 s58, {144*2560}, 0
        s_lshl_b32 s29, s{sB}, 7
        s_sub_u32 s30, {(544+64)*4}, s29
        s_add_u32 s29, s29, 128""")
        for k in range(5):
            a(f"buffer_load_dwordx4 v[{132+4*k}:{135+4*k}], v128, s[48:51], s29 offen")
            a(f"buffer_load_dwordx4 v[{152+4*k}:{155+4*k}], v128, s[56:59], s30 offen")
            if k < 4: a(f"""s_add_u32 s29, s29, {32*2560}
            s_add_u32 s30, s30, {32*2560}""")
        a(f"""v_mov_b32 v172, 0
        s_mul_i32 s29, s{sWv}, {36*2560}
        s_add_u32 s29, s29, {31*4}
        v_mul_u32_u24 v130, 2560, v{vL}
        s_cmp_eq_u32 s{sB}, 0
        s_cselect_b32 s30, 36, 0
        v_cmp_gt_u32 vcc, s30, v{vL}
        s_and_saveexec_b64 s[52:53], vcc
        buffer_load_dword v172, v130, s[48:51], s29 offen
        s_mov_b64 exec, s[52:53]
        v_lshlrev_b32 v131, 2, v0
        v_mov_b32 v173, 0
        v_cmp_gt_u32 vcc, 80, v0
        s_and_saveexec_b64 s[52:53], vcc
        ds_write_b32 v131, v173 offset:{YB}
        s_mov_b64 exec, s[52:53]""")
    a(f"""s_cmp_eq_u32 s{sB}, 0
    s_cbranch_scc1 {L}_w5
    s_waitcnt vmcnt({4+NO})
    s_branch {L}_w
    """)
    a.label(f"{L}_w5")
    a(f"s_waitcnt vmcnt({5+NO})")
    a.label(f"{L}_w")
    a(f"""ds_write_b64 v4, v[8:9]
    ds_write_b64 v4, v[10:11] offset:2048
    ds_write_b64 v4, v[12:13] offset:1024
    ds_write_b64 v4, v[14:15] offset:{1024+2048}
    s_waitcnt lgkmcnt(0)
    s_barrier
    v_lshlrev_b32 v4, 3, v{vL}""")
    stamp(a, 3)
    AF = lambda p, ri, st: 80 + ((p*2 + ri)*2 + st)*4
    for st in range(2):
        for p in range(2):
            for ri in range(2):
                base = p*4224 + ri*2048 + st*1024
                r = AF(p, ri, st)
                a(f"ds_read_b64_tr_b16 v[{r}:{r+1}], v4 offset:{base}")
                a(f"ds_read_b64_tr_b16 v[{r+2}:{r+3}], v4 offset:{base+512}")
    ACC = 112
    for st in range(2):
        a(f"s_waitcnt lgkmcnt({8 if st == 0 else 0})")
        for p in range(2):
            acc = ACC + 4*p
            c = "0" if st == 0 else f"v[{acc}:{acc+3}]"
            a(f"v_mfma_f32_16x16x32_bf16 v[{acc}:{acc+3}], v[{AF(p,0,st)}:{AF(p,0,st)+3}], v[{GC+4*st}:{GC+4*st+3}], {c}")
        for p in range(2):
            acc = ACC + 4*p
            a(f"v_mfma_f32_16x16x32_bf16 v[{acc}:{acc+3}], v[{AF(p,1,st)}:{AF(p,1,st)+3}], v[{GS+4*st}:{GS+4*st+3}], v[{acc}:{acc+3}]")
    stamp(a, 4)
    a("s_waitcnt vmcnt(0)")
    stamp(a, 5)
    if own:
        for k in range(1, 5):
            for h in range(2):
                a(f"v_pk_add_f32 v[{132+2*h}:{133+2*h}], v[{132+2*h}:{133+2*h}], v[{132+4*k+2*h}:{133+4*k+2*h}]")
                a(f"v_pk_add_f32 v[{152+2*h}:{153+2*h}], v[{152+2*h}:{153+2*h}], v[{152+4*k+2*h}:{153+4*k+2*h}]")
        R8 = [132, 133, 134, 135, 152, 153, 154, 155]
        for r in R8: a(f"v_add_f32 v{r}, v{r}, v{r} row_ror:8 row_mask:0xf bank_mask:0xf")
        for m in ("quad_perm:[1,0,3,2]", "quad_perm:[2,3,0,1]", "row_half_mirror", "row_mirror"):
            a(f"v_add_f32 v172, v172, v172 {m} row_mask:0xf bank_mask:0xf")
        reduce_hi(a, R8 + [172], list(range(136, 145)))
        a(f"""v_lshlrev_b32 v131, 4, v{vL}
        s_mov_b64 s[52:53], exec
        s_mov_b64 exec, 0xff""")
        for j in range(4):
            a(f"ds_add_f32 v131, v{132+j} offset:{YB+4*j}")
            a(f"ds_add_f32 v131, v{152+j} offset:{YB+128+4*j}")
        a(f"""s_mov_b64 exec, 1
        ds_add_f32 v131, v172 offset:{YB+256}
        s_mov_b64 exec, s[52:53]
        v_lshlrev_b32 v131, 5, v{vG}
        v_sub_u32 v130, 96, v131
        v_mov_b32 v129, 0
        v_mov_b32 v173, s45
        v_mul_f32 v173, {fl(-1.4426950408889634)}, v173
        v_exp_f32 v173, v173
        v_add_f32 v173, 1.0, v173
        v_rcp_f32 v173, v173
        v_cmp_eq_u32 vcc, s44, v{vT}
        v_cndmask_b32 v174, 0, v173, vcc
        v_cmp_eq_u32 vcc, s44, v{vTM}
        v_cndmask_b32 v175, 0, v173, vcc
        s_waitcnt lgkmcnt(0)
        s_barrier
        ds_read_b128 v[132:135], v131 offset:{YB}
        ds_read_b128 v[136:139], v131 offset:{YB+16}
        ds_read_b128 v[152:155], v130 offset:{YB+128}
        ds_read_b128 v[156:159], v130 offset:{YB+128+16}
        ds_read_b32 v172, v129 offset:{YB+256}
        s_waitcnt lgkmcnt(0)""")
    a(f"""v_mul_f32 v32, v32, v33
    v_add_f32 v33, 1.0, v33
    v_mul_f32 v34, v34, v35
    v_add_f32 v35, 1.0, v35""")
    for p in range(2):
        for h in range(2):
            s_ = ACC + 4*p + 2*h
            a(f"v_pk_add_f32 v[{40+4*p+2*h}:{41+4*p+2*h}], v[{s_}:{s_+1}], v[32:33] op_sel_hi:[1,0] neg_lo:[0,1] neg_hi:[0,1]")
            a(f"v_pk_add_f32 v[{48+4*p+2*h}:{49+4*p+2*h}], v[{s_}:{s_+1}], v[34:35] op_sel_hi:[1,0] neg_lo:[0,1] neg_hi:[0,1]")
    if own:
        for k in range(8):
            a(f"v_fmac_f32 v{40+(k&1)*4+(k>>1)}, v{132+k}, v174")
            kk = 7 - k
            a(f"v_fmac_f32 v{48+(kk&1)*4+(kk>>1)}, v{152+k}, v175")
    for i in range(4):
        a(f"v_lshlrev_b32 v56, 16, v{24+i}")
        a(f"v_and_b32 v57, 0xffff0000, v{24+i}")
        a(f"v_fma_f32 v56, v56, v33, v{40+i}")
        a(f"v_fma_f32 v57, v57, v33, v{44+i}")
        a(f"v_cvt_pk_bf16_f32 v{64+i}, v56, v57")
    for i in range(4):
        a(f"v_lshlrev_b32 v58, 16, v{28+i}")
        a(f"v_and_b32 v59, 0xffff0000, v{28+i}")
        a(f"v_fma_f32 v58, v58, v35, v{48+4+3-i}")
        a(f"v_fma_f32 v59, v59, v35, v{48+3-i}")
        a(f"v_cvt_pk_bf16_f32 v{68+i}, v58, v59")
    a(f"""buffer_store_dwordx4 v[64:67], v20, s[{SO}:{SO+3}], 0 offen{OST}
    buffer_store_dwordx4 v[68:71], v21, s[{SO}:{SO+3}], 0 offen{OST}""")
    a(f"""s_cmp_eq_u32 s{sB}, 0
    s_cbranch_scc0 {L}_done
    v_lshlrev_b32 v37, 16, v37
    v_fma_f32 v37, v37, v33, -v32
    {"v_fmac_f32 v37, v172, v174" if own else ""}
    v_cvt_pk_bf16_f32 v37, v37, v37
    s_mov_b64 exec, 0xffff
    buffer_store_short v37, v36, s[{SO}:{SO+3}], 0 offen""")
    a.label(f"{L}_done")
```

```python
from asmlib import *
from k1 import *
from k2 import *
WS_SEL = 0x249000
PSTR = 2560
XB = 2048*1152

def dpp_red(a, op, regs):
    for m in ("quad_perm:[1,0,3,2]", "quad_perm:[2,3,0,1]", "row_half_mirror", "row_mirror"):
        for r in regs: a(f"{op} v{r}, v{r}, v{r} {m} row_mask:0xf bank_mask:0xf")
def hi_red(a, op, regs, tmps):
    for r, t in zip(regs, tmps): a(f"v_mov_b32 v{t}, v{r}")
    for r, t in zip(regs, tmps): a(f"v_permlane16_swap_b32 v{r}, v{t}")
    for r, t in zip(regs, tmps): a(f"{op} v{r}, v{r}, v{t}")
    for r, t in zip(regs, tmps): a(f"v_mov_b32 v{t}, v{r}")
    for r, t in zip(regs, tmps): a(f"v_permlane32_swap_b32 v{r}, v{t}")
    for r, t in zip(regs, tmps): a(f"{op} v{r}, v{r}, v{t}")

def statwg(a, L, sJ=3):
    SX, SW, SWS, SD = 12, 16, 20, 24
    srd(a, SX, 4, XB); srd(a, SW, 6, 1152)
    a(f"""v_lshrrev_b32 v1, 3, v0
    s_lshl_b32 s29, s{sJ}, 5
    v_add_u32 v1, s29, v1
    v_and_b32 v2, 7, v0
    v_lshlrev_b32 v2, 4, v2
    s_movk_i32 s30, 1152
    v_mul_lo_u32 v3, v1, s30
    v_add_u32 v3, v3, v2""")
    X = lambda i: 8 + 4*i
    W = lambda i: 44 + 4*i
    for i in range(9):
        a(f"buffer_load_dwordx4 v[{X(i)}:{X(i)+3}], v3, s[{SX}:{SX+3}], 0 offen offset:{128*i}")
        a(f"buffer_load_dwordx4 v[{W(i)}:{W(i)+3}], v2, s[{SW}:{SW+3}], 0 offen offset:{128*i}")
    stamp(a, 1)
    srd(a, SWS, 8, 0x400000); srd(a, SD, 42, 256)
    vS, vQ, vD, vW = 80, 81, 82, 83
    a(f"""v_mov_b32 v{vS}, 0
    v_mov_b32 v{vQ}, 0
    v_mov_b32 v{vD}, 0
    v_mov_b32 v{vW}, 0
    s_mov_b32 s35, 0x3f803f80
    v_lshrrev_b32 v4, 6, v0
    v_lshlrev_b32 v4, 2, v4""")
    for i in range(9):
        a(f"s_waitcnt vmcnt({16-2*i})")
        for j in range(4):
            a(f"v_dot2_f32_bf16 v{vS}, v{X(i)+j}, s35, v{vS}")
            a(f"v_dot2_f32_bf16 v{vQ}, v{X(i)+j}, v{X(i)+j}, v{vQ}")
            a(f"v_dot2_f32_bf16 v{vD}, v{X(i)+j}, v{W(i)+j}, v{vD}")
            a(f"v_dot2_f32_bf16 v{vW}, v{W(i)+j}, s35, v{vW}")
    stamp(a, 2)
    for m in ("quad_perm:[1,0,3,2]", "quad_perm:[2,3,0,1]", "row_half_mirror"):
        for r in (vS, vQ, vD, vW): a(f"v_add_f32 v{r}, v{r}, v{r} {m} row_mask:0xf bank_mask:0xf")
    a(f"""v_mul_f32 v84, {fl(1/576)}, v{vS}
    v_mul_f32 v{vQ}, {fl(1/576)}, v{vQ}
    v_fma_f32 v{vQ}, -v84, v84, v{vQ}
    v_max_f32 v{vQ}, 0, v{vQ}
    v_add_f32 v{vQ}, {fl(1e-5)}, v{vQ}
    v_rsq_f32 v85, v{vQ}
    v_fma_f32 v86, -v84, v{vW}, v{vD}
    v_mul_f32 v86, v86, v85
    v_mov_b32 v87, 0
    v_ashrrev_i32 v88, 31, v86
    v_or_b32 v88, 0x80000000, v88
    v_xor_b32 v88, v88, v86
    v_and_b32 v88, 0xfffff800, v88
    v_sub_u32 v89, 2047, v1
    v_or_b32 v88, v88, v89
    v_max_u32 v88, v88, v88 row_ror:8 row_mask:0xf bank_mask:0xf""")
    hi_red(a, "v_max_u32", [88], [89])
    a(f"""ds_write_b32 v4, v88
    v_lshlrev_b32 v90, 4, v1
    v_add_u32 v90, {WS_STATS}, v90
    v_and_b32 v91, 7, v0
    v_cmp_eq_u32 vcc, 0, v91
    s_waitcnt lgkmcnt(0)
    s_barrier
    v_mov_b32 v92, 0
    ds_read_b128 v[92:95], v92
    s_and_saveexec_b64 s[36:37], vcc
    buffer_store_dwordx4 v[84:87], v90, s[{SWS}:{SWS+3}], 0 offen
    s_mov_b64 exec, s[36:37]
    s_lshl_b32 s29, s{sJ}, 2
    v_mov_b32 v96, s29
    s_waitcnt lgkmcnt(0)
    v_max_u32 v92, v92, v93
    v_max_u32 v94, v94, v95
    v_max_u32 v92, v92, v94
    v_cmp_eq_u32 vcc, 0, v0
    s_and_saveexec_b64 s[36:37], vcc
    s_cbranch_execz {L}_nk
    buffer_store_dword v92, v96, s[{SD}:{SD+3}], 0 offen sc1""")
    a.label(f"{L}_nk")
    a("s_mov_b64 exec, s[36:37]")

def prefetch(a, sPJ, sWv, vL, dummy):
    a(f"""s_and_b32 s29, s{sPJ}, 7
    s_lshr_b32 s30, s{sPJ}, 3
    s_cmp_eq_u32 s{sWv}, 1
    s_cselect_b32 s44, s38, s36
    s_cselect_b32 s45, s39, s37
    s_cmp_eq_u32 s{sWv}, 2
    s_cselect_b32 s44, s40, s44
    s_cselect_b32 s45, s41, s45
    s_movk_i32 s31, 9216
    s_movk_i32 s32, 1152
    s_cselect_b32 s31, 1152, s31
    s_cselect_b32 s32, {576*1152}, s32
    s_mov_b32 s46, {576*9216}
    s_mov_b32 s47, 0x00020000
    s_mul_i32 s29, s29, s32
    s_mul_i32 s30, s30, 24
    s_mul_i32 s30, s30, s31
    s_add_u32 s29, s29, s30
    v_lshrrev_b32 v1, 3, v{vL}
    v_mul_lo_u32 v1, v1, s31
    v_and_b32 v2, 7, v{vL}
    v_lshl_add_u32 v1, v2, 4, v1
    s_lshl_b32 s31, s31, 3""")
    for g in range(3):
        for seg in range(9):
            a(f"buffer_load_dwordx4 v[{dummy}:{dummy+3}], v1, s[44:47], s29 offen offset:{128*seg}{PFMOD}")
        if g < 2: a("s_add_u32 s29, s29, s31")
PFMOD = ""
SLEEP0 = 0
SLEEP1 = 1
PST = ""
MIDDOWN = False
GUMOD = ""
DNMOD = ""

def moe2(a, L, sU, sPJ, late_down=True, pf=True):
    SX, SD, SWS, SDB = 12, 16, 20, 48
    sWv, sIdx = 26, 27
    a(f"""v_lshrrev_b32 v5, 6, v0
    v_readfirstlane_b32 s{sWv}, v5
    v_and_b32 v5, 63, v0
    s_cmp_eq_u32 s{sWv}, 3
    s_cbranch_scc1 {L}_help""")
    vL, vN, vG = 5, 6, 7
    if pf: prefetch(a, sPJ, sWv, vL, 216)
    stamp(a, 1)
    srd(a, SD, 40, 4608*1152); srd(a, SWS, 8, 0x400000)
    a(f"""v_and_b32 v{vN}, 15, v{vL}
    v_lshrrev_b32 v{vG}, 4, v{vL}
    v_and_b32 v1, 3, v{vN}
    v_lshrrev_b32 v2, 2, v{vN}
    v_and_b32 v2, 1, v2
    v_lshrrev_b32 v3, 3, v{vN}
    v_lshlrev_b32 v4, 2, v2
    v_add_u32 v4, v4, v{vG}
    s_mul_i32 s29, s{sWv}, 192
    v_add_u32 v4, s29, v4
    s_movk_i32 s30, 9216
    v_mul_lo_u32 v8, v4, s30
    v_lshlrev_b32 v9, 4, v1
    s_lshl_b32 s31, s{sU}, 6
    v_add3_u32 v8, v8, v9, s31
    v_cmp_eq_u32 vcc, 1, v3
    v_mov_b32 v10, s36
    v_mov_b32 v11, s37
    v_mov_b32 v12, s38
    v_mov_b32 v13, s39
    v_cndmask_b32 v10, v10, v12, vcc
    v_cndmask_b32 v11, v11, v13, vcc
    v_add_co_u32 v10, vcc, v10, v8
    v_addc_co_u32 v11, vcc, 0, v11, vcc
    s_mov_b32 s29, 73728""")
    WG = 32
    for i in range(24):
        a(f"global_load_dwordx4 v[{WG+4*i}:{WG+4*i+3}], v[10:11], off{GUMOD}")
        if i < 23:
            a(f"""v_add_co_u32 v10, vcc, s29, v10
            v_addc_co_u32 v11, vcc, 0, v11, vcc""")
    WD = 128
    a(f"""v_lshrrev_b32 v1, 3, v{vN}
    v_and_b32 v2, 7, v{vN}
    v_lshlrev_b32 v1, 2, v1
    v_add_u32 v1, v1, v{vG}
    s_lshl_b32 s29, s{sU}, 5
    v_add_u32 v1, s29, v1
    s_movk_i32 s30, 1152
    v_mul_lo_u32 v1, v1, s30
    v_lshlrev_b32 v2, 4, v2
    s_mul_i32 s31, s{sWv}, 384
    v_add3_u32 v15, v1, v2, s31""")
    def down_loads():
        for k in range(3):
            for fg in range(4):
                a(f"s_mov_b32 s29, {fg*8*1152}")
                a(f"buffer_load_dwordx4 v[{WD+16*k+4*fg}:{WD+16*k+4*fg+3}], v15, s[{SD}:{SD+3}], s29 offen offset:{128*k}{DNMOD}")
    if not late_down: down_loads()
    MK = 22
    a(f"""v_and_b32 v1, 7, v{vN}
    v_and_b32 v2, 1, v1
    v_lshrrev_b32 v1, 1, v1
    v_mov_b32 v3, 0xffff
    v_mov_b32 v4, 0xffff0000
    v_cmp_eq_u32 vcc, 1, v2
    v_cndmask_b32 v3, v3, v4, vcc""")
    for i in range(4):
        a(f"""v_cmp_eq_u32 vcc, {i}, v1
        v_cndmask_b32 v{MK+i}, 0, v3, vcc""")
    a(f"""v_lshrrev_b32 v1, 3, v{vN}
    v_lshlrev_b32 v1, 2, v1
    v_add_u32 v1, v1, v{vG}
    v_lshlrev_b32 v1, 2, v1
    s_mul_i32 s29, s{sWv}, 768
    v_add_u32 v26, s29, v1
    s_lshl_b32 s29, s{sWv}, 7
    s_add_u32 s29, s29, 6144
    v_add_u32 v27, s29, v1""")
    stamp(a, 2)
    if MIDDOWN:
        a("s_barrier")
        down_loads()
    a("s_barrier")
    stamp(a, 3)
    XS = 176
    for i in range(24): a(f"ds_read_b32 v{XS+i}, v26 offset:{32*i}")
    if late_down and not MIDDOWN: down_loads()
    ACC = [208, 212]
    AB = [200, 204]
    a("s_waitcnt lgkmcnt(0)")
    for i in range(24):
        ab = AB[i & 1]; acc = ACC[i & 1]
        if i % 4 == 0: a(f"s_waitcnt vmcnt({12 + 24 - (i+4)})")
        for j in range(4): a(f"v_and_b32 v{ab+j}, v{XS+i}, v{MK+j}")
        c = "0" if i < 2 else f"v[{acc}:{acc+3}]"
        a(f"v_mfma_f32_16x16x32_bf16 v[{acc}:{acc+3}], v[{ab}:{ab+3}], v[{WG+4*i}:{WG+4*i+3}], {c}")
    a(f"""v_pk_add_f32 v[208:209], v[208:209], v[212:213]
    v_pk_add_f32 v[210:211], v[210:211], v[214:215]""")
    stamp(a, 4)
    a(f"""v_lshrrev_b32 v1, 1, v{vG}
    v_lshrrev_b32 v2, 2, v{vN}
    v_and_b32 v2, 1, v2
    v_cmp_eq_u32 vcc, v1, v2
    v_lshlrev_b32 v1, 8, v1
    v_lshrrev_b32 v3, 3, v{vN}
    v_lshlrev_b32 v3, 7, v3
    v_and_b32 v4, 3, v{vN}
    v_lshlrev_b32 v4, 5, v4
    v_add3_u32 v1, v1, v3, v4
    v_and_b32 v3, 1, v{vG}
    v_lshlrev_b32 v3, 4, v3
    s_lshl_b32 s29, s{sWv}, 9
    v_add3_u32 v1, v1, v3, s29
    s_and_saveexec_b64 s[30:31], vcc
    ds_write_b128 v1, v[208:211] offset:4096
    s_mov_b64 exec, s[30:31]
    v_and_b32 v1, 31, v{vL}
    v_lshrrev_b32 v2, 5, v{vL}
    v_lshlrev_b32 v1, 2, v1
    v_lshlrev_b32 v2, 7, v2
    v_add_u32 v1, v1, v2
    s_waitcnt lgkmcnt(0)
    s_barrier""")
    H = 176
    for k in range(6): a(f"ds_read_b32 v{H+k}, v1 offset:{4096+256*k}")
    a("s_waitcnt lgkmcnt(0)")
    a(f"""v_add_f32 v{H}, v{H}, v{H+1}
    v_add_f32 v{H+2}, v{H+2}, v{H+3}
    v_add_f32 v{H+4}, v{H+4}, v{H+5}
    v_add_f32 v{H}, v{H}, v{H+2}
    v_add_f32 v{H}, v{H}, v{H+4}
    v_mov_b32 v{H+1}, v{H}
    v_permlane32_swap_b32 v{H}, v{H+1}""")
    a(f"""v_cvt_pk_bf16_f32 v{H}, v{H}, v{H+1}
    v_and_b32 v{H+1}, 0xffff0000, v{H}
    v_lshlrev_b32 v{H}, 16, v{H}
    v_mul_f32 v{H+2}, {fl(-1.4426950408889634)}, v{H}
    v_exp_f32 v{H+2}, v{H+2}
    v_add_f32 v{H+2}, 1.0, v{H+2}
    v_rcp_f32 v{H+2}, v{H+2}
    v_mul_f32 v{H+2}, v{H}, v{H+2}
    v_cvt_pk_bf16_f32 v{H+2}, v{H+2}, v{H+2}
    v_lshlrev_b32 v{H+2}, 16, v{H+2}
    v_mul_f32 v{H+2}, v{H+2}, v{H+1}
    v_cvt_pk_bf16_f32 v{H+2}, v{H+2}, v{H+2}""")
    a(f"""v_and_b32 v1, 31, v{vL}
    v_lshlrev_b32 v1, 2, v1
    s_lshl_b32 s29, s{sWv}, 7
    s_add_u32 s29, s29, 6144
    v_add_u32 v1, s29, v1
    ds_write_b32 v1, v{H+2}
    s_waitcnt lgkmcnt(0)""")
    for fg in range(4): a(f"ds_read_b32 v{H+4+fg}, v27 offset:{32*fg}")
    a("s_waitcnt lgkmcnt(0)")
    stamp(a, 5)
    AD = 200
    for fg in range(4):
        for j in range(4): a(f"v_and_b32 v{AD+4*fg+j}, v{H+4+fg}, v{MK+j}")
    DA = 220
    a("s_waitcnt vmcnt(0)")
    for fg in range(4):
        for k in range(3):
            acc = DA + 4*k
            c = "0" if fg == 0 else f"v[{acc}:{acc+3}]"
            a(f"v_mfma_f32_16x16x32_bf16 v[{acc}:{acc+3}], v[{AD+4*fg}:{AD+4*fg+3}], v[{WD+16*k+4*fg}:{WD+16*k+4*fg+3}], {c}")
    a(f"""v_cmp_gt_u32 vcc, 8, v{vN}
    v_cmp_gt_u32 s[34:35], 32, v{vL}
    s_and_b64 s[34:35], s[34:35], vcc
    v_lshlrev_b32 v3, 5, v{vN}
    v_and_b32 v4, 1, v{vG}
    v_lshlrev_b32 v4, 4, v4
    v_add_u32 v1, v3, v4
    s_mul_i32 s30, s{sWv}, 768
    v_add_u32 v1, s30, v1
    s_mul_i32 s29, s{sU}, {PSTR}
    s_add_u32 s29, s29, {WS_PART}""")
    for k in range(3):
        a(f"""v_add_u32 v{2+k}, {256*k}, v1
        v_cmp_gt_u32 vcc, {288*4}, v{2+k}
        v_cndmask_b32 v3{k}, 64*4, 31*4, vcc""".replace("64*4", "s31").replace("31*4", "v29") if False else f"""v_add_u32 v{28+k}, {256*k}, v1""")
    a(f"""v_mov_b32 v2, {64*4}
    v_mov_b32 v3, {31*4}""")
    for k in range(3):
        a(f"""v_cmp_gt_u32 vcc, {288*4}, v{28+k}
        v_cndmask_b32 v4, v2, v3, vcc
        v_add_u32 v{28+k}, v4, v{28+k}""")
    for r in range(12): a(f"v_mov_b32 v{H+r}, v{DA+r}")
    for r in range(12): a(f"v_permlane32_swap_b32 v{DA+r}, v{H+r}")
    for r in range(12): a(f"v_add_f32 v{DA+r}, v{H+r}, v{DA+r} row_ror:8 row_mask:0xf bank_mask:0xf")
    a("s_mov_b64 exec, s[34:35]")
    for k in range(3):
        a(f"buffer_store_dwordx4 v[{DA+4*k}:{DA+4*k+3}], v{28+k}, s[{SWS}:{SWS+3}], s29 offen{PST}")
    a(f"""s_cmp_eq_u32 s{sWv}, 1
    s_cbranch_scc0 {L}_done
    s_mov_b64 exec, 16
    v_mov_b32 v1, {319*4}
    buffer_store_dwordx4 v[{DA+4}:{DA+7}], v1, s[{SWS}:{SWS+3}], s29 offen{PST}""")
    a(f"s_branch {L}_done")
    a.label(f"{L}_help")
    srd(a, SDB, 42, 256); srd(a, SX, 4, XB); srd(a, SWS, 8, 0x400000)
    a(f"""v_lshlrev_b32 v1, 2, v5
    s_mov_b32 s30, 20000
    s_mov_b32 s35, 0x3f803f80
    v_mov_b32 v20, 0
    v_mov_b32 v21, 0
    v_mov_b32 v12, 0
    v_lshlrev_b32 v2, 3, v5""")
    if SLEEP0: a(f"s_sleep {SLEEP0}")
    a.label(f"{L}_poll")
    a(f"""buffer_load_dword v16, v1, s[{SDB}:{SDB+3}], 0 offen sc1
    s_waitcnt vmcnt(0)
    v_cmp_eq_u32 vcc, 0, v16
    s_cbranch_vccz {L}_got
    s_sub_u32 s30, s30, 1
    s_cmp_eq_u32 s30, 0
    s_cbranch_scc1 {L}_got
    s_sleep {SLEEP1}
    s_branch {L}_poll""")
    a.label(f"{L}_got")
    stamp(a, 1)
    dpp_red(a, "v_max_u32", [16]); hi_red(a, "v_max_u32", [16], [17])
    a(f"""v_readfirstlane_b32 s31, v16
    s_and_b32 s{sIdx}, s31, 0x7ff
    s_sub_u32 s{sIdx}, 2047, s{sIdx}
    s_mul_i32 s29, s{sIdx}, 1152""")
    for k in range(4): a(f"buffer_load_dword v{8+k}, v1, s[{SX}:{SX+3}], s29 offen offset:{256*k}")
    a(f"""s_mov_b32 s50, -1
    s_mov_b32 s51, 0
    s_mov_b64 exec, s[50:51]
    buffer_load_dword v12, v1, s[{SX}:{SX+3}], s29 offen offset:1024
    s_mov_b64 exec, -1
    {"s_barrier" if MIDDOWN else ""}
    s_and_b32 s32, s31, 0xfffff800
    s_xor_b32 s33, s32, 0x80000000
    s_not_b32 s34, s31
    s_or_b32 s34, s34, 0x400
    s_and_b32 s34, s34, 0xfffffc00
    s_cmp_lt_i32 s31, 0
    s_cselect_b32 s32, s33, s34
    v_mov_b32 v18, s{sIdx}
    v_mov_b32 v19, s32
    v_mov_b32 v3, {WS_SEL}
    s_waitcnt vmcnt(0)""")
    stamp(a, 2)
    for k in range(5):
        a(f"v_dot2_f32_bf16 v20, v{8+k}, s35, v20")
        a(f"v_dot2_f32_bf16 v21, v{8+k}, v{8+k}, v21")
    dpp_red(a, "v_add_f32", [20, 21]); hi_red(a, "v_add_f32", [20, 21], [22, 23])
    a(f"""v_mul_f32 v20, {fl(1/576)}, v20
    v_mul_f32 v21, {fl(1/576)}, v21
    v_fma_f32 v21, -v20, v20, v21
    v_max_f32 v21, 0, v21
    v_add_f32 v21, {fl(1e-5)}, v21
    v_rsq_f32 v21, v21""")
    for k in range(5):
        a(f"""v_lshlrev_b32 v24, 16, v{8+k}
        v_and_b32 v25, 0xffff0000, v{8+k}
        v_sub_f32 v24, v24, v20
        v_sub_f32 v25, v25, v20
        v_mul_f32 v24, v24, v21
        v_mul_f32 v25, v25, v21
        v_cvt_pk_bf16_f32 v{28+2*k}, v24, v24
        v_cvt_pk_bf16_f32 v{29+2*k}, v25, v25""")
        if k == 4: a("s_mov_b64 exec, s[50:51]")
        a(f"ds_write_b64 v2, v[{28+2*k}:{29+2*k}] offset:{512*k}")
    a(f"""s_mov_b64 exec, -1
    s_waitcnt lgkmcnt(0)
    s_barrier""")
    stamp(a, 3)
    a(f"""s_cmp_eq_u32 s{sU}, 0
    s_cbranch_scc0 {L}_done
    s_mov_b64 exec, 1
    buffer_store_dwordx2 v[18:19], v3, s[{SWS}:{SWS+3}], 0 offen
    s_mov_b64 exec, -1""")
    a.label(f"{L}_done")
```

```python
import sys
sys.path.insert(0, "gen")
from asmlib import *
import k1 as K1M
import k3 as K3M
import k2 as K2M
from k1 import *
from k2 import *
from k3 import *
NAME = "parallel_sum__spectral_fnet__moe_arch_mod__prompt"
HDR = open("cdna_kernels/" + NAME + ".s.ref").read().split("; Override launch")[0]
opts = set(sys.argv[2:])
if "stamps" in opts: K1M.STAMPS = True
if "hwid" in opts: K1M.HWID = True
if "quiet" in opts: K1M.QUIET = True
if "xlds" in opts: K1M.XLDS = True
if "xco" in opts: K1M.XCO = True
if "vco" in opts: K1M.VCO = True
if "midown" in opts: K3M.MIDDOWN = True
if "pfnt" in opts: K3M.PFMOD = " nt"
def desc(name, vgpr, sgpr=102):
    acc = (vgpr + 3)//4*4
    return f""".amdhsa_kernel {name}
  .amdhsa_next_free_vgpr {vgpr}
  .amdhsa_next_free_sgpr {sgpr}
  .amdhsa_accum_offset {acc}
  .amdhsa_group_segment_fixed_size 0
  .amdhsa_kernarg_size 104
  .amdhsa_user_sgpr_count 2
  .amdhsa_user_sgpr_kernarg_segment_ptr 1
  .amdhsa_system_sgpr_workgroup_id_x 1
.end_amdhsa_kernel
"""
def kern(name, body):
    return f""".globl {name}
.p2align 8
.type {name},@function
{name}:
{body}
    s_endpgm
"""
def prefetch2(a, sPJ, sWv, vL, dummy):
    a(f"""s_and_b32 s29, s{sPJ}, 7
    s_lshr_b32 s30, s{sPJ}, 3
    s_cmp_eq_u32 s{sWv}, 1
    s_cselect_b32 s44, s38, s36
    s_cselect_b32 s45, s39, s37
    s_cmp_ge_u32 s{sWv}, 2
    s_cselect_b32 s44, s40, s44
    s_cselect_b32 s45, s41, s45
    s_movk_i32 s31, 9216
    s_movk_i32 s32, 1152
    s_cselect_b32 s31, 1152, s31
    s_cselect_b32 s32, {576*1152}, s32
    s_mov_b32 s46, {576*9216}
    s_mov_b32 s47, 0x00020000
    s_mul_i32 s29, s29, s32
    s_lshr_b32 s33, s30, 2
    s_mul_i32 s33, s33, 192
    s_and_b32 s34, s30, 3
    s_mul_i32 s34, s34, 24
    s_add_u32 s33, s33, s34
    s_add_u32 s33, s33, {PFROW0}
    s_lshl_b32 s34, s30, 1
    s_add_u32 s34, s34, s{sWv}
    s_sub_u32 s34, s34, 2
    s_mul_i32 s34, s34, 24
    s_cmp_ge_u32 s{sWv}, 2
    s_cselect_b32 s30, s34, s33
    s_mul_i32 s30, s30, s31
    s_add_u32 s29, s29, s30
    v_lshrrev_b32 v1, 3, v{vL}
    v_mul_lo_u32 v1, v1, s31
    v_and_b32 v2, 7, v{vL}
    v_lshl_add_u32 v1, v2, 4, v1
    s_lshl_b32 s31, s31, 3""")
    for g in range(3):
        for seg in range(9):
            a(f"buffer_load_dwordx4 v[{dummy}:{dummy+3}], v1, s[44:47], s29 offen offset:{128*seg}{K3M.PFMOD}")
        if g < 2: a("s_add_u32 s29, s29, s31")
def prefetch3(a, sPJ, sWv, vL, dummy):
    a(f"""s_and_b32 s29, s{sPJ}, 7
    s_lshr_b32 s30, s{sPJ}, 3
    s_lshl_b32 s30, s30, 1
    s_lshr_b32 s33, s{sWv}, 1
    s_add_u32 s30, s30, s33
    s_and_b32 s33, s{sWv}, 1
    s_cmp_eq_u32 s33, 1
    s_cselect_b32 s44, s38, s36
    s_cselect_b32 s45, s39, s37
    s_mov_b32 s46, {576*9216}
    s_mov_b32 s47, 0x00020000
    s_mul_i32 s29, s29, 1152
    s_lshr_b32 s33, s30, 2
    s_mul_i32 s33, s33, 192
    s_and_b32 s34, s30, 3
    s_mul_i32 s34, s34, 24
    s_add_u32 s33, s33, s34
    s_add_u32 s33, s33, {PFROW0}
    s_mul_i32 s30, s33, 9216
    s_add_u32 s29, s29, s30
    s_movk_i32 s31, 9216
    v_lshrrev_b32 v1, 3, v{vL}
    v_mul_lo_u32 v1, v1, s31
    v_and_b32 v2, 7, v{vL}
    v_lshl_add_u32 v1, v2, 4, v1
    s_lshl_b32 s31, s31, 3""")
    for g in range(3):
        for seg in range(9):
            a(f"buffer_load_dwordx4 v[{dummy}:{dummy+3}], v1, s[44:47], s29 offen offset:{128*seg}{K3M.PFMOD}")
        if g < 2: a("s_add_u32 s29, s29, s31")
PFROW0 = 96
for o in opts:
    if o.startswith("gu="): K3M.GUMOD = " " + o[3:]
    if o.startswith("dn="): K3M.DNMOD = " " + o[3:]
    if o.startswith("vst="): K1M.VST = " " + o[4:].replace("+", " ")
    if o.startswith("pst="): K3M.PST = " " + o[4:].replace("+", " ")
    if o.startswith("ost="): K2M.OST = " " + o[4:].replace("+", " ")
    if o == "swap": K2M.SWAP = True
    if o == "swap2": K2M.SWAP2 = True
    if o == "hack": K2M.HACK = True
    if o == "bar0": K3M.BAR0 = True
    if o.startswith("sl0="): K3M.SLEEP0 = int(o[4:])
    if o.startswith("sl1="): K3M.SLEEP1 = int(o[4:])
    if o == "wlds": K1M.WLDS = True
    if o.startswith("pfrow="): PFROW0 = int(o[6:])
PFALL = "pfall" in opts
PF3 = "pf3" in opts
NPF = 96 if "pf2" in opts else (48 if (PFALL or PF3) else 0)
PFFIRST = "pffirst" in opts
def k1():
    a = Asm()
    a("""s_cmp_ge_u32 s2, 256
    s_cbranch_scc1 k1_aux
    s_load_dwordx2 s[4:5], s[0:1], 0
    s_load_dwordx2 s[6:7], s[0:1], 48
    s_load_dwordx2 s[42:43], s[0:1], 88
    s_load_dwordx2 s[8:9], s[0:1], 96""")
    if "noprio" not in opts: a("s_setprio 3")
    a("s_waitcnt lgkmcnt(0)")
    stamp_init(a); stamp(a, 0)
    phase1(a, "k1", stat=True)
    stamp_flush(a, 0)
    a("s_endpgm")
    a.label("k1_aux")
    mo0 = 256 + (NPF if PFFIRST else 0)
    pf0 = 256 if PFFIRST else 256 + 144
    a(f"""s_cmp_ge_u32 s2, {256+144+NPF}
    s_cbranch_scc1 k1_end
    s_load_dwordx2 s[4:5], s[0:1], 0
    s_load_dwordx4 s[36:39], s[0:1], 56
    s_load_dwordx2 s[40:41], s[0:1], 72
    s_load_dwordx2 s[42:43], s[0:1], 88
    s_load_dwordx2 s[8:9], s[0:1], 96""")
    if NPF:
        a(f"""s_sub_u32 s28, s2, {pf0}
        s_cmp_lt_u32 s28, {NPF}
        s_cbranch_scc0 k1_moe
        v_lshrrev_b32 v5, 6, v0
        v_readfirstlane_b32 s26, v5
        v_and_b32 v5, 63, v0
        s_waitcnt lgkmcnt(0)""")
        stamp_init(a); stamp(a, 0)
        if PFALL:
            a("""s_cmp_eq_u32 s26, 3
            s_cbranch_scc1 k1_end
            s_sub_u32 s28, s2, 256""")
            prefetch(a, 28, 26, 5, 8)
        elif PF3:
            prefetch3(a, 28, 26, 5, 8)
        else: prefetch2(a, 28, 26, 5, 8)
        stamp(a, 1)
        a("s_waitcnt vmcnt(0)")
        stamp_flush(a, 0)
        a("s_endpgm")
    a.label("k1_moe")
    a(f"""s_sub_u32 s3, s2, {mo0}
    s_and_b32 s29, s3, 7
    s_mul_i32 s29, s29, 18
    s_lshr_b32 s3, s3, 3
    s_add_u32 s3, s3, s29
    s_waitcnt lgkmcnt(0)""")
    stamp_init(a); stamp(a, 0)
    if PFALL: a("s_sub_u32 s28, s2, 256")
    moe2(a, "k1m", 3, 28, late_down=("earlydown" not in opts), pf=PFALL)
    if K1M.STAMPS:
        a("""v_lshrrev_b32 v1, 6, v0
        s_nop 1
        v_readfirstlane_b32 s97, v1
        s_cmp_eq_u32 s97, 3
        s_cbranch_scc1 k1_hst""")
        stamp_flush(a, 0)
        a("s_endpgm")
        a.label("k1_hst")
        a(f"s_add_u32 s97, s2, {512-mo0}")
        stamp_flush(a, 0, swg="s97", tid=192)
    a.label("k1_end")
    return a.text()
def k2():
    a = Asm()
    a("""s_cmp_ge_u32 s2, 288
    s_cbranch_scc1 k2_end
    s_load_dwordx2 s[4:5], s[0:1], 0
    s_load_dwordx2 s[10:11], s[0:1], 80
    s_load_dwordx2 s[8:9], s[0:1], 96
    s_mov_b32 s3, s2
    s_waitcnt lgkmcnt(0)""")
    stamp_init(a); stamp(a, 0)
    phase2(a, "k2p", 3, moe=True)
    stamp_flush(a, 2)
    a.label("k2_end")
    return a.text()
launch = f"""; @launch kernel=k1_kernel grid=({256+144+NPF},1,1) block=(256,1,1) lds={(55360 + (4608 if K1M.WLDS else 0)) if K1M.XLDS else 18496}
; @launch kernel=k2_kernel grid=(288,1,1) block=(256,1,1) lds=9216
"""
src = HDR + launch + """.amdgcn_target "amdgcn-amd-amdhsa--gfx950"
.text
""" + kern("k1_kernel", k1()) + kern("k2_kernel", k2())
src += """.section .rodata,"a"
.p2align 6
""" + desc("k1_kernel", 256) + ".p2align 6\n" + desc("k2_kernel", 256 if K1M.STAMPS else 176)
open(sys.argv[1], "w").write(src)
print("written", sys.argv[1], len(src))
```

```python
from asmlib import *
from k1 import *
from k2 import *
WS_SEL = 0x249000
PSTR = 2560
XB = 2048*1152

def dpp_red(a, op, regs):
    for m in ("quad_perm:[1,0,3,2]", "quad_perm:[2,3,0,1]", "row_half_mirror", "row_mirror"):
        for r in regs: a(f"{op} v{r}, v{r}, v{r} {m} row_mask:0xf bank_mask:0xf")
def hi_red(a, op, regs, tmps):
    for r, t in zip(regs, tmps): a(f"v_mov_b32 v{t}, v{r}")
    for r, t in zip(regs, tmps): a(f"v_permlane16_swap_b32 v{r}, v{t}")
    for r, t in zip(regs, tmps): a(f"{op} v{r}, v{r}, v{t}")
    for r, t in zip(regs, tmps): a(f"v_mov_b32 v{t}, v{r}")
    for r, t in zip(regs, tmps): a(f"v_permlane32_swap_b32 v{r}, v{t}")
    for r, t in zip(regs, tmps): a(f"{op} v{r}, v{r}, v{t}")

def statwg(a, L, sJ=3):
    SX, SW, SWS, SD = 12, 16, 20, 24
    srd(a, SX, 4, XB); srd(a, SW, 6, 1152)
    a(f"""v_lshrrev_b32 v1, 3, v0
    s_lshl_b32 s29, s{sJ}, 5
    v_add_u32 v1, s29, v1
    v_and_b32 v2, 7, v0
    v_lshlrev_b32 v2, 4, v2
    s_movk_i32 s30, 1152
    v_mul_lo_u32 v3, v1, s30
    v_add_u32 v3, v3, v2""")
    X = lambda i: 8 + 4*i
    W = lambda i: 44 + 4*i
    for i in range(9):
        a(f"buffer_load_dwordx4 v[{X(i)}:{X(i)+3}], v3, s[{SX}:{SX+3}], 0 offen offset:{128*i}")
        a(f"buffer_load_dwordx4 v[{W(i)}:{W(i)+3}], v2, s[{SW}:{SW+3}], 0 offen offset:{128*i}")
    stamp(a, 1)
    srd(a, SWS, 8, 0x400000); srd(a, SD, 42, 256)
    vS, vQ, vD, vW = 80, 81, 82, 83
    a(f"""v_mov_b32 v{vS}, 0
    v_mov_b32 v{vQ}, 0
    v_mov_b32 v{vD}, 0
    v_mov_b32 v{vW}, 0
    s_mov_b32 s35, 0x3f803f80
    v_lshrrev_b32 v4, 6, v0
    v_lshlrev_b32 v4, 2, v4""")
    for i in range(9):
        a(f"s_waitcnt vmcnt({16-2*i})")
        for j in range(4):
            a(f"v_dot2_f32_bf16 v{vS}, v{X(i)+j}, s35, v{vS}")
            a(f"v_dot2_f32_bf16 v{vQ}, v{X(i)+j}, v{X(i)+j}, v{vQ}")
            a(f"v_dot2_f32_bf16 v{vD}, v{X(i)+j}, v{W(i)+j}, v{vD}")
            a(f"v_dot2_f32_bf16 v{vW}, v{W(i)+j}, s35, v{vW}")
    stamp(a, 2)
    for m in ("quad_perm:[1,0,3,2]", "quad_perm:[2,3,0,1]", "row_half_mirror"):
        for r in (vS, vQ, vD, vW): a(f"v_add_f32 v{r}, v{r}, v{r} {m} row_mask:0xf bank_mask:0xf")
    a(f"""v_mul_f32 v84, {fl(1/576)}, v{vS}
    v_mul_f32 v{vQ}, {fl(1/576)}, v{vQ}
    v_fma_f32 v{vQ}, -v84, v84, v{vQ}
    v_max_f32 v{vQ}, 0, v{vQ}
    v_add_f32 v{vQ}, {fl(1e-5)}, v{vQ}
    v_rsq_f32 v85, v{vQ}
    v_fma_f32 v86, -v84, v{vW}, v{vD}
    v_mul_f32 v86, v86, v85
    v_mov_b32 v87, 0
    v_ashrrev_i32 v88, 31, v86
    v_or_b32 v88, 0x80000000, v88
    v_xor_b32 v88, v88, v86
    v_and_b32 v88, 0xfffff800, v88
    v_sub_u32 v89, 2047, v1
    v_or_b32 v88, v88, v89
    v_max_u32 v88, v88, v88 row_ror:8 row_mask:0xf bank_mask:0xf""")
    hi_red(a, "v_max_u32", [88], [89])
    a(f"""ds_write_b32 v4, v88
    v_lshlrev_b32 v90, 4, v1
    v_add_u32 v90, {WS_STATS}, v90
    v_and_b32 v91, 7, v0
    v_cmp_eq_u32 vcc, 0, v91
    s_waitcnt lgkmcnt(0)
    s_barrier
    v_mov_b32 v92, 0
    ds_read_b128 v[92:95], v92
    s_and_saveexec_b64 s[36:37], vcc
    buffer_store_dwordx4 v[84:87], v90, s[{SWS}:{SWS+3}], 0 offen
    s_mov_b64 exec, s[36:37]
    s_lshl_b32 s29, s{sJ}, 2
    v_mov_b32 v96, s29
    s_waitcnt lgkmcnt(0)
    v_max_u32 v92, v92, v93
    v_max_u32 v94, v94, v95
    v_max_u32 v92, v92, v94
    v_cmp_eq_u32 vcc, 0, v0
    s_and_saveexec_b64 s[36:37], vcc
    s_cbranch_execz {L}_nk
    buffer_store_dword v92, v96, s[{SD}:{SD+3}], 0 offen sc1""")
    a.label(f"{L}_nk")
    a("s_mov_b64 exec, s[36:37]")

def prefetch(a, sPJ, sWv, vL, dummy):
    a(f"""s_and_b32 s29, s{sPJ}, 7
    s_lshr_b32 s30, s{sPJ}, 3
    s_cmp_eq_u32 s{sWv}, 1
    s_cselect_b32 s44, s38, s36
    s_cselect_b32 s45, s39, s37
    s_cmp_eq_u32 s{sWv}, 2
    s_cselect_b32 s44, s40, s44
    s_cselect_b32 s45, s41, s45
    s_movk_i32 s31, 9216
    s_movk_i32 s32, 1152
    s_cselect_b32 s31, 1152, s31
    s_cselect_b32 s32, {576*1152}, s32
    s_mov_b32 s46, {576*9216}
    s_mov_b32 s47, 0x00020000
    s_mul_i32 s29, s29, s32
    s_mul_i32 s30, s30, 24
    s_mul_i32 s30, s30, s31
    s_add_u32 s29, s29, s30
    v_lshrrev_b32 v1, 3, v{vL}
    v_mul_lo_u32 v1, v1, s31
    v_and_b32 v2, 7, v{vL}
    v_lshl_add_u32 v1, v2, 4, v1
    s_lshl_b32 s31, s31, 3""")
    for g in range(3):
        for seg in range(9):
            a(f"buffer_load_dwordx4 v[{dummy}:{dummy+3}], v1, s[44:47], s29 offen offset:{128*seg}{PFMOD}")
        if g < 2: a("s_add_u32 s29, s29, s31")
PFMOD = ""
BAR0 = False
SLEEP0 = 0
SLEEP1 = 1
PST = ""
MIDDOWN = False
GUMOD = ""
DNMOD = ""

def moe2(a, L, sU, sPJ, late_down=True, pf=True):
    SX, SD, SWS, SDB = 12, 16, 20, 48
    sWv, sIdx = 26, 27
    a(f"""v_lshrrev_b32 v5, 6, v0
    v_readfirstlane_b32 s{sWv}, v5
    v_and_b32 v5, 63, v0
    s_cmp_eq_u32 s{sWv}, 3
    s_cbranch_scc1 {L}_help""")
    vL, vN, vG = 5, 6, 7
    if pf: prefetch(a, sPJ, sWv, vL, 216)
    stamp(a, 1)
    srd(a, SD, 40, 4608*1152); srd(a, SWS, 8, 0x400000)
    a(f"""v_and_b32 v{vN}, 15, v{vL}
    v_lshrrev_b32 v{vG}, 4, v{vL}
    v_and_b32 v1, 3, v{vN}
    v_lshrrev_b32 v2, 2, v{vN}
    v_and_b32 v2, 1, v2
    v_lshrrev_b32 v3, 3, v{vN}
    v_lshlrev_b32 v4, 2, v2
    v_add_u32 v4, v4, v{vG}
    s_mul_i32 s29, s{sWv}, 192
    v_add_u32 v4, s29, v4
    s_movk_i32 s30, 9216
    v_mul_lo_u32 v8, v4, s30
    v_lshlrev_b32 v9, 4, v1
    s_lshl_b32 s31, s{sU}, 6
    v_add3_u32 v8, v8, v9, s31
    v_cmp_eq_u32 vcc, 1, v3
    v_mov_b32 v10, s36
    v_mov_b32 v11, s37
    v_mov_b32 v12, s38
    v_mov_b32 v13, s39
    v_cndmask_b32 v10, v10, v12, vcc
    v_cndmask_b32 v11, v11, v13, vcc
    v_add_co_u32 v10, vcc, v10, v8
    v_addc_co_u32 v11, vcc, 0, v11, vcc
    s_mov_b32 s29, 73728""")
    WG = 32
    for i in range(24):
        a(f"global_load_dwordx4 v[{WG+4*i}:{WG+4*i+3}], v[10:11], off{GUMOD}")
        if i < 23:
            a(f"""v_add_co_u32 v10, vcc, s29, v10
            v_addc_co_u32 v11, vcc, 0, v11, vcc""")
    WD = 128
    a(f"""v_lshrrev_b32 v1, 3, v{vN}
    v_and_b32 v2, 7, v{vN}
    v_lshlrev_b32 v1, 2, v1
    v_add_u32 v1, v1, v{vG}
    s_lshl_b32 s29, s{sU}, 5
    v_add_u32 v1, s29, v1
    s_movk_i32 s30, 1152
    v_mul_lo_u32 v1, v1, s30
    v_lshlrev_b32 v2, 4, v2
    s_mul_i32 s31, s{sWv}, 384
    v_add3_u32 v15, v1, v2, s31""")
    def down_loads():
        for k in range(3):
            for fg in range(4):
                a(f"s_mov_b32 s29, {fg*8*1152}")
                a(f"buffer_load_dwordx4 v[{WD+16*k+4*fg}:{WD+16*k+4*fg+3}], v15, s[{SD}:{SD+3}], s29 offen offset:{128*k}{DNMOD}")
    if not late_down: down_loads()
    MK = 22
    a(f"""v_and_b32 v1, 7, v{vN}
    v_and_b32 v2, 1, v1
    v_lshrrev_b32 v1, 1, v1
    v_mov_b32 v3, 0xffff
    v_mov_b32 v4, 0xffff0000
    v_cmp_eq_u32 vcc, 1, v2
    v_cndmask_b32 v3, v3, v4, vcc""")
    for i in range(4):
        a(f"""v_cmp_eq_u32 vcc, {i}, v1
        v_cndmask_b32 v{MK+i}, 0, v3, vcc""")
    a(f"""v_lshrrev_b32 v1, 3, v{vN}
    v_lshlrev_b32 v1, 2, v1
    v_add_u32 v1, v1, v{vG}
    v_lshlrev_b32 v1, 2, v1
    s_mul_i32 s29, s{sWv}, 768
    v_add_u32 v26, s29, v1
    s_lshl_b32 s29, s{sWv}, 7
    s_add_u32 s29, s29, 6144
    v_add_u32 v27, s29, v1""")
    stamp(a, 2)
    if BAR0: a("s_barrier")
    if MIDDOWN:
        a("s_barrier")
        if late_down: down_loads()
    a("s_barrier")
    stamp(a, 3)
    XS = 176
    for i in range(24): a(f"ds_read_b32 v{XS+i}, v26 offset:{32*i}")
    if late_down and not MIDDOWN: down_loads()
    ACC = [208, 212]
    AB = [200, 204]
    a("s_waitcnt lgkmcnt(0)")
    for i in range(24):
        ab = AB[i & 1]; acc = ACC[i & 1]
        if i % 4 == 0: a(f"s_waitcnt vmcnt({12 + 24 - (i+4)})")
        for j in range(4): a(f"v_and_b32 v{ab+j}, v{XS+i}, v{MK+j}")
        c = "0" if i < 2 else f"v[{acc}:{acc+3}]"
        a(f"v_mfma_f32_16x16x32_bf16 v[{acc}:{acc+3}], v[{ab}:{ab+3}], v[{WG+4*i}:{WG+4*i+3}], {c}")
    a(f"""v_pk_add_f32 v[208:209], v[208:209], v[212:213]
    v_pk_add_f32 v[210:211], v[210:211], v[214:215]""")
    stamp(a, 4)
    a(f"""v_lshrrev_b32 v1, 1, v{vG}
    v_lshrrev_b32 v2, 2, v{vN}
    v_and_b32 v2, 1, v2
    v_cmp_eq_u32 vcc, v1, v2
    v_lshlrev_b32 v1, 8, v1
    v_lshrrev_b32 v3, 3, v{vN}
    v_lshlrev_b32 v3, 7, v3
    v_and_b32 v4, 3, v{vN}
    v_lshlrev_b32 v4, 5, v4
    v_add3_u32 v1, v1, v3, v4
    v_and_b32 v3, 1, v{vG}
    v_lshlrev_b32 v3, 4, v3
    s_lshl_b32 s29, s{sWv}, 9
    v_add3_u32 v1, v1, v3, s29
    s_and_saveexec_b64 s[30:31], vcc
    ds_write_b128 v1, v[208:211] offset:4096
    s_mov_b64 exec, s[30:31]
    v_and_b32 v1, 31, v{vL}
    v_lshrrev_b32 v2, 5, v{vL}
    v_lshlrev_b32 v1, 2, v1
    v_lshlrev_b32 v2, 7, v2
    v_add_u32 v1, v1, v2
    s_waitcnt lgkmcnt(0)
    s_barrier""")
    H = 176
    for k in range(6): a(f"ds_read_b32 v{H+k}, v1 offset:{4096+256*k}")
    a("s_waitcnt lgkmcnt(0)")
    a(f"""v_add_f32 v{H}, v{H}, v{H+1}
    v_add_f32 v{H+2}, v{H+2}, v{H+3}
    v_add_f32 v{H+4}, v{H+4}, v{H+5}
    v_add_f32 v{H}, v{H}, v{H+2}
    v_add_f32 v{H}, v{H}, v{H+4}
    v_mov_b32 v{H+1}, v{H}
    v_permlane32_swap_b32 v{H}, v{H+1}""")
    a(f"""v_cvt_pk_bf16_f32 v{H}, v{H}, v{H+1}
    v_and_b32 v{H+1}, 0xffff0000, v{H}
    v_lshlrev_b32 v{H}, 16, v{H}
    v_mul_f32 v{H+2}, {fl(-1.4426950408889634)}, v{H}
    v_exp_f32 v{H+2}, v{H+2}
    v_add_f32 v{H+2}, 1.0, v{H+2}
    v_rcp_f32 v{H+2}, v{H+2}
    v_mul_f32 v{H+2}, v{H}, v{H+2}
    v_cvt_pk_bf16_f32 v{H+2}, v{H+2}, v{H+2}
    v_lshlrev_b32 v{H+2}, 16, v{H+2}
    v_mul_f32 v{H+2}, v{H+2}, v{H+1}
    v_cvt_pk_bf16_f32 v{H+2}, v{H+2}, v{H+2}""")
    a(f"""v_and_b32 v1, 31, v{vL}
    v_lshlrev_b32 v1, 2, v1
    s_lshl_b32 s29, s{sWv}, 7
    s_add_u32 s29, s29, 6144
    v_add_u32 v1, s29, v1
    ds_write_b32 v1, v{H+2}
    s_waitcnt lgkmcnt(0)""")
    for fg in range(4): a(f"ds_read_b32 v{H+4+fg}, v27 offset:{32*fg}")
    a("s_waitcnt lgkmcnt(0)")
    stamp(a, 5)
    AD = 200
    for fg in range(4):
        for j in range(4): a(f"v_and_b32 v{AD+4*fg+j}, v{H+4+fg}, v{MK+j}")
    DA = 220
    a("s_waitcnt vmcnt(0)")
    for fg in range(4):
        for k in range(3):
            acc = DA + 4*k
            c = "0" if fg == 0 else f"v[{acc}:{acc+3}]"
            a(f"v_mfma_f32_16x16x32_bf16 v[{acc}:{acc+3}], v[{AD+4*fg}:{AD+4*fg+3}], v[{WD+16*k+4*fg}:{WD+16*k+4*fg+3}], {c}")
    a(f"""v_cmp_gt_u32 vcc, 8, v{vN}
    v_cmp_gt_u32 s[34:35], 32, v{vL}
    s_and_b64 s[34:35], s[34:35], vcc
    v_lshlrev_b32 v3, 5, v{vN}
    v_and_b32 v4, 1, v{vG}
    v_lshlrev_b32 v4, 4, v4
    v_add_u32 v1, v3, v4
    s_mul_i32 s30, s{sWv}, 768
    v_add_u32 v1, s30, v1
    s_mul_i32 s29, s{sU}, {PSTR}
    s_add_u32 s29, s29, {WS_PART}""")
    for k in range(3):
        a(f"""v_add_u32 v{2+k}, {256*k}, v1
        v_cmp_gt_u32 vcc, {288*4}, v{2+k}
        v_cndmask_b32 v3{k}, 64*4, 31*4, vcc""".replace("64*4", "s31").replace("31*4", "v29") if False else f"""v_add_u32 v{28+k}, {256*k}, v1""")
    a(f"""v_mov_b32 v2, {64*4}
    v_mov_b32 v3, {31*4}""")
    for k in range(3):
        a(f"""v_cmp_gt_u32 vcc, {288*4}, v{28+k}
        v_cndmask_b32 v4, v2, v3, vcc
        v_add_u32 v{28+k}, v4, v{28+k}""")
    for r in range(12): a(f"v_mov_b32 v{H+r}, v{DA+r}")
    for r in range(12): a(f"v_permlane32_swap_b32 v{DA+r}, v{H+r}")
    for r in range(12): a(f"v_add_f32 v{DA+r}, v{H+r}, v{DA+r} row_ror:8 row_mask:0xf bank_mask:0xf")
    a("s_mov_b64 exec, s[34:35]")
    for k in range(3):
        a(f"buffer_store_dwordx4 v[{DA+4*k}:{DA+4*k+3}], v{28+k}, s[{SWS}:{SWS+3}], s29 offen{PST}")
    a(f"""s_cmp_eq_u32 s{sWv}, 1
    s_cbranch_scc0 {L}_done
    s_mov_b64 exec, 16
    v_mov_b32 v1, {319*4}
    buffer_store_dwordx4 v[{DA+4}:{DA+7}], v1, s[{SWS}:{SWS+3}], s29 offen{PST}""")
    a(f"s_branch {L}_done")
    a.label(f"{L}_help")
    srd(a, SDB, 42, 256); srd(a, SX, 4, XB); srd(a, SWS, 8, 0x400000)
    a(f"""v_lshlrev_b32 v1, 2, v5
    s_mov_b32 s30, 20000
    s_mov_b32 s35, 0x3f803f80
    v_mov_b32 v20, 0
    v_mov_b32 v21, 0
    v_mov_b32 v12, 0
    v_lshlrev_b32 v2, 3, v5""")
    if BAR0: a("s_barrier")
    if SLEEP0: a(f"s_sleep {SLEEP0}")
    a.label(f"{L}_poll")
    a(f"""buffer_load_dword v16, v1, s[{SDB}:{SDB+3}], 0 offen sc1
    s_waitcnt vmcnt(0)
    v_cmp_eq_u32 vcc, 0, v16
    s_cbranch_vccz {L}_got
    s_sub_u32 s30, s30, 1
    s_cmp_eq_u32 s30, 0
    s_cbranch_scc1 {L}_got
    s_sleep {SLEEP1}
    s_branch {L}_poll""")
    a.label(f"{L}_got")
    stamp(a, 1)
    dpp_red(a, "v_max_u32", [16]); hi_red(a, "v_max_u32", [16], [17])
    a(f"""v_readfirstlane_b32 s31, v16
    s_and_b32 s{sIdx}, s31, 0x7ff
    s_sub_u32 s{sIdx}, 2047, s{sIdx}
    s_mul_i32 s29, s{sIdx}, 1152""")
    for k in range(4): a(f"buffer_load_dword v{8+k}, v1, s[{SX}:{SX+3}], s29 offen offset:{256*k}")
    a(f"""s_mov_b32 s50, -1
    s_mov_b32 s51, 0
    s_mov_b64 exec, s[50:51]
    buffer_load_dword v12, v1, s[{SX}:{SX+3}], s29 offen offset:1024
    s_mov_b64 exec, -1
    {"s_barrier" if MIDDOWN else ""}
    s_and_b32 s32, s31, 0xfffff800
    s_xor_b32 s33, s32, 0x80000000
    s_not_b32 s34, s31
    s_or_b32 s34, s34, 0x400
    s_and_b32 s34, s34, 0xfffffc00
    s_cmp_lt_i32 s31, 0
    s_cselect_b32 s32, s33, s34
    v_mov_b32 v18, s{sIdx}
    v_mov_b32 v19, s32
    v_mov_b32 v3, {WS_SEL}
    s_waitcnt vmcnt(0)""")
    stamp(a, 2)
    for k in range(5):
        a(f"v_dot2_f32_bf16 v20, v{8+k}, s35, v20")
        a(f"v_dot2_f32_bf16 v21, v{8+k}, v{8+k}, v21")
    dpp_red(a, "v_add_f32", [20, 21]); hi_red(a, "v_add_f32", [20, 21], [22, 23])
    a(f"""v_mul_f32 v20, {fl(1/576)}, v20
    v_mul_f32 v21, {fl(1/576)}, v21
    v_fma_f32 v21, -v20, v20, v21
    v_max_f32 v21, 0, v21
    v_add_f32 v21, {fl(1e-5)}, v21
    v_rsq_f32 v21, v21""")
    for k in range(5):
        a(f"""v_lshlrev_b32 v24, 16, v{8+k}
        v_and_b32 v25, 0xffff0000, v{8+k}
        v_sub_f32 v24, v24, v20
        v_sub_f32 v25, v25, v20
        v_mul_f32 v24, v24, v21
        v_mul_f32 v25, v25, v21
        v_cvt_pk_bf16_f32 v{28+2*k}, v24, v24
        v_cvt_pk_bf16_f32 v{29+2*k}, v25, v25""")
        if k == 4: a("s_mov_b64 exec, s[50:51]")
        a(f"ds_write_b64 v2, v[{28+2*k}:{29+2*k}] offset:{512*k}")
    a(f"""s_mov_b64 exec, -1
    s_waitcnt lgkmcnt(0)
    s_barrier""")
    stamp(a, 3)
    a(f"""s_cmp_eq_u32 s{sU}, 0
    s_cbranch_scc0 {L}_done
    s_mov_b64 exec, 1
    buffer_store_dwordx2 v[18:19], v3, s[{SWS}:{SWS+3}], 0 offen
    s_mov_b64 exec, -1""")
    a.label(f"{L}_done")
```

```python
from asmlib import *
from k1 import *
OUTBYTES = XBYTES
OST = ""
SWAP = False
SWAP2 = False
HACK = False

def phase2(a, L, sU=2, moe=False):
    SX, SO, SWS = 12, 16, 20
    sT1, sB, sWv = 24, 25, 26
    if moe: a("""s_mov_b32 s46, 0x249000
    s_load_dwordx2 s[44:45], s[8:9], s46""")
    srd(a, SX, 4, XBYTES); srd(a, SO, 10, OUTBYTES); srd(a, SWS, 8, 0x400000)
    a(f"""s_and_b32 s29, s{sU}, 31
    s_lshr_b32 s{sB}, s{sU}, 5
    s_xor_b32 s30, s{sB}, 1
    s_cmp_lt_u32 s{sB}, 2
    s_cselect_b32 s{sB}, s30, s{sB}
    s_xor_b32 s30, s29, 16
    s_cmp_eq_u32 s{sB}, 8
    s_cselect_b32 s29, s30, s29""")
    if SWAP and moe:
        hi = "s_cmp_eq_u32 s34, 1"
        a(f"""s_mov_b32 s34, 0
        s_mov_b32 s35, 12
        s_cmp_eq_u32 s{sB}, 8
        s_cselect_b32 s34, 1, s34
        s_cbranch_scc1 {L}_sw
        s_cmp_eq_u32 s{sB}, 4
        s_cbranch_scc1 {L}_sw""")
        if SWAP2: a(f"""s_mov_b32 s35, 6
        s_cmp_eq_u32 s{sB}, 1
        s_cselect_b32 s34, 1, s34
        s_cbranch_scc1 {L}_sw
        s_cmp_eq_u32 s{sB}, 5
        s_cbranch_scc1 {L}_sw""")
        a(f"s_branch {L}_nsw")
        a.label(f"{L}_sw")
        a(f"""s_xor_b32 s31, s29, 16
        s_cmp_eq_u32 s34, 1
        s_cselect_b32 s30, s29, s31
        s_and_b32 s31, s30, 7
        s_lshr_b32 s32, s30, 3
        s_lshl_b32 s31, s31, 1
        s_lshr_b32 s32, s32, 1
        s_add_u32 s31, s31, s32
        s_waitcnt lgkmcnt(0)
        s_and_b32 s32, s44, 31
        s_sub_u32 s33, 32, s32
        s_min_u32 s33, s32, s33
        s_cmp_eq_u32 s32, 16
        s_cselect_b32 s33, 0, s33
        s_cmp_eq_u32 s33, s31
        s_cbranch_scc0 {L}_nsw
        s_xor_b32 s29, s29, 16
        s_sub_u32 s{sB}, s35, s{sB}""")
        a.label(f"{L}_nsw")
    a(f"""s_and_b32 s30, s29, 7
    s_lshr_b32 s31, s29, 3
    s_lshl_b32 s30, s30, 1
    s_lshr_b32 s32, s31, 1
    s_add_u32 s30, s30, s32
    s_sub_u32 s32, 32, s30
    s_cmp_eq_u32 s30, 0
    s_cselect_b32 s32, 16, s32
    s_and_b32 s31, s31, 1
    s_cmp_eq_u32 s31, 1
    s_cselect_b32 s{sT1}, s32, s30
    v_lshrrev_b32 v5, 6, v0
    v_readfirstlane_b32 s{sWv}, v5
    v_and_b32 v5, 63, v0""")
    vL = 5
    a(f"""v_lshrrev_b32 v1, 3, v0
    v_and_b32 v2, 7, v0
    s_movk_i32 s29, 1152
    v_mul_lo_u32 v3, v1, s29
    v_lshlrev_b32 v4, 4, v2
    s_mul_i32 s30, s{sT1}, 73728
    s_lshl_b32 s31, s{sB}, 7
    s_add_u32 s30, s30, s31
    v_add3_u32 v3, v3, v4, s30
    buffer_load_dwordx4 v[8:11], v3, s[{SWS}:{SWS+3}], 0 offen
    s_mov_b32 s31, {32*1152}
    buffer_load_dwordx4 v[12:15], v3, s[{SWS}:{SWS+3}], s31 offen""")
    a(f"""v_lshrrev_b32 v4, 2, v2
    v_mul_u32_u24 v4, 4224, v4
    v_and_b32 v6, 3, v2
    v_lshlrev_b32 v6, 3, v6
    v_lshlrev_b32 v7, 5, v1
    v_add3_u32 v4, v4, v6, v7""")
    vN, vG, vT, vTM = 16, 17, 18, 19
    if HACK:
        a(f"""v_lshrrev_b32 v{vN}, 2, v{vL}
    v_and_b32 v{vG}, 3, v{vL}""")
    else:
        a(f"""v_and_b32 v{vN}, 15, v{vL}
    v_lshrrev_b32 v{vG}, 4, v{vL}""")
    a(f"""s_lshl_b32 s29, s{sWv}, 4
    v_add_u32 v{vT}, s29, v{vN}
    v_lshlrev_b32 v{vT}, 5, v{vT}
    v_add_u32 v{vT}, s{sT1}, v{vT}
    v_sub_u32 v{vTM}, 2048, v{vT}
    v_and_b32 v{vTM}, 2047, v{vTM}
    s_movk_i32 s29, 1152
    v_mul_lo_u32 v20, v{vT}, s29
    v_mul_lo_u32 v21, v{vTM}, s29
    v_lshlrev_b32 v22, 4, v{vG}
    s_lshl_b32 s30, s{sB}, 6
    s_add_u32 s31, s30, 2
    v_add3_u32 v20, v20, v22, s31
    s_sub_u32 s31, 1136, s30
    v_sub_u32 v21, v21, v22
    v_add_u32 v21, s31, v21
    buffer_load_dwordx4 v[24:27], v20, s[{SX}:{SX+3}], 0 offen
    buffer_load_dwordx4 v[28:31], v21, s[{SX}:{SX+3}], 0 offen
    v_and_b32 v22, 31, v{vT}
    v_lshrrev_b32 v23, 5, v{vT}
    v_lshl_add_u32 v22, v22, 6, v23
    v_lshlrev_b32 v22, 3, v22
    v_and_b32 v23, 31, v{vTM}
    v_lshrrev_b32 v36, 5, v{vTM}
    v_lshl_add_u32 v23, v23, 6, v36
    v_lshlrev_b32 v23, 3, v23
    s_mov_b32 s31, {WS_STATS}
    buffer_load_dwordx2 v[32:33], v22, s[{SWS}:{SWS+3}], s31 offen
    buffer_load_dwordx2 v[34:35], v23, s[{SWS}:{SWS+3}], s31 offen""")
    vN2, vG2 = vN, vG
    if HACK:
        vN2, vG2 = 38, 39
        a(f"""v_and_b32 v{vN2}, 15, v{vL}
    v_lshrrev_b32 v{vG2}, 4, v{vL}
    v_lshrrev_b32 v120, 2, v{vL}
    v_lshl_add_u32 v120, v{vG}, 4, v120
    v_lshlrev_b32 v120, 2, v120""")
    a(f"""v_subrev_u32 v36, 2, v20
    s_cmp_eq_u32 s{sB}, 0
    s_cbranch_scc0 {L}_nc0
    buffer_load_ushort v37, v36, s[{SX}:{SX+3}], 0 offen""")
    a.label(f"{L}_nc0")
    stamp(a, 1)
    T, vFE, vTH, vDL, vC2 = 40, 56, 57, 58, 60
    GC, GS = 64, 72
    a(f"""s_lshl_b32 s29, s{sWv}, 4
    v_add_u32 v{vFE}, s29, v{vN2}
    v_cvt_f32_u32 v{vFE}, v{vFE}
    v_mul_f32 v{vDL}, {fl(1/64)}, v{vFE}
    v_cos_f32 v{vC2}, v{vDL}
    v_cvt_f32_u32 v62, v{vG2}
    v_mul_f32 v62, 4.0, v62
    v_mul_f32 v{vTH}, v62, v{vDL}
    v_add_f32 v{vC2}, v{vC2}, v{vC2}
    v_and_b32 v63, 1, v{vN2}
    v_mul_u32_u24 v63, 0x8000, v63
    v_lshlrev_b32 v61, 16, v63
    v_or_b32 v63, v63, v61
    v_mov_b32 v59, 0x80008000""")
    cheb_group(a, T, vTH, vDL, vC2, 4, GC, GS)
    a(f"""v_add_f32 v62, {fl(16.0)}, v62
    v_mul_f32 v{vTH}, v62, v{vDL}""")
    cheb_group(a, T, vTH, vDL, vC2, 4, GC + 2, GS + 2)
    for i in range(4):
        a(f"v_xor_b32 v{GS+i}, v{GS+i}, v59")
    for i in range(4):
        a(f"v_xor_b32 v{GC+4+i}, v{GC+i}, v63")
        a(f"v_xor_b32 v{GS+4+i}, v{GS+i}, v63")
    stamp(a, 2)
    if moe:
        a(f"""s_waitcnt lgkmcnt(0)
        s_and_b32 s29, s44, 31
        s_sub_u32 s30, 2048, s44
        s_and_b32 s30, s30, 31
        s_cmp_eq_u32 s29, s{sT1}
        s_cbranch_scc1 {L}_own
        s_cmp_eq_u32 s30, s{sT1}
        s_cbranch_scc1 {L}_own""")
        p2tail(a, L + "n", False, locals())
        a("s_endpgm" if not P2_FALL else f"s_branch {L}_end")
        a.label(f"{L}_own")
        p2tail(a, L + "o", True, locals())
        a.label(f"{L}_end")
    else:
        p2tail(a, L, False, locals())

P2_FALL = True
def p2tail(a, L, own, E):
    SX, SO, SWS, sT1, sB, sWv = E["SX"], E["SO"], E["SWS"], E["sT1"], E["sB"], E["sWv"]
    vL, vN, vG, vT, vTM, GC, GS = E["vL"], E["vN"], E["vG"], E["vT"], E["vTM"], E["GC"], E["GS"]
    NO = 0
    YB = 8448
    if own:
        NO = 11
        SP = 48
        a(f"""s_add_u32 s48, s8, {WS_PART}
        s_addc_u32 s49, s9, 0
        s_mov_b32 s50, {144*2560}
        s_mov_b32 s51, 0x00020000
        v_lshrrev_b32 v128, 3, v0
        v_mul_u32_u24 v128, 2560, v128
        v_and_b32 v129, 7, v0
        v_lshlrev_b32 v129, 4, v129
        v_add_u32 v128, v128, v129
        s_mov_b32 s56, s48
        s_mov_b32 s57, s49
        s_mov_b32 s59, 0x00020000
        s_and_b32 s29, s44, 31
        s_cmp_eq_u32 s29, s{sT1}
        s_cselect_b32 s50, {144*2560}, 0
        s_sub_u32 s30, 2048, s44
        s_and_b32 s30, s30, 31
        s_cmp_eq_u32 s30, s{sT1}
        s_cselect_b32 s58, {144*2560}, 0
        s_lshl_b32 s29, s{sB}, 7
        s_sub_u32 s30, {(544+64)*4}, s29
        s_add_u32 s29, s29, 128""")
        for k in range(5):
            a(f"buffer_load_dwordx4 v[{132+4*k}:{135+4*k}], v128, s[48:51], s29 offen")
            a(f"buffer_load_dwordx4 v[{152+4*k}:{155+4*k}], v128, s[56:59], s30 offen")
            if k < 4: a(f"""s_add_u32 s29, s29, {32*2560}
            s_add_u32 s30, s30, {32*2560}""")
        a(f"""v_mov_b32 v172, 0
        s_mul_i32 s29, s{sWv}, {36*2560}
        s_add_u32 s29, s29, {31*4}
        v_mul_u32_u24 v130, 2560, v{vL}
        s_cmp_eq_u32 s{sB}, 0
        s_cselect_b32 s30, 36, 0
        v_cmp_gt_u32 vcc, s30, v{vL}
        s_and_saveexec_b64 s[52:53], vcc
        buffer_load_dword v172, v130, s[48:51], s29 offen
        s_mov_b64 exec, s[52:53]
        v_lshlrev_b32 v131, 2, v0
        v_mov_b32 v173, 0
        v_cmp_gt_u32 vcc, 80, v0
        s_and_saveexec_b64 s[52:53], vcc
        ds_write_b32 v131, v173 offset:{YB}
        s_mov_b64 exec, s[52:53]""")
    a(f"""s_cmp_eq_u32 s{sB}, 0
    s_cbranch_scc1 {L}_w5
    s_waitcnt vmcnt({4+NO})
    s_branch {L}_w
    """)
    a.label(f"{L}_w5")
    a(f"s_waitcnt vmcnt({5+NO})")
    a.label(f"{L}_w")
    a(f"""ds_write_b64 v4, v[8:9]
    ds_write_b64 v4, v[10:11] offset:2048
    ds_write_b64 v4, v[12:13] offset:1024
    ds_write_b64 v4, v[14:15] offset:{1024+2048}
    s_waitcnt lgkmcnt(0)
    s_barrier
    v_lshlrev_b32 v4, 3, v{vL}""")
    stamp(a, 3)
    AF = lambda p, ri, st: 80 + ((p*2 + ri)*2 + st)*4
    for st in range(2):
        for p in range(2):
            for ri in range(2):
                base = p*4224 + ri*2048 + st*1024
                r = AF(p, ri, st)
                a(f"ds_read_b64_tr_b16 v[{r}:{r+1}], v4 offset:{base}")
                a(f"ds_read_b64_tr_b16 v[{r+2}:{r+3}], v4 offset:{base+512}")
    ACC = 112
    for st in range(2):
        a(f"s_waitcnt lgkmcnt({8 if st == 0 else 0})")
        for p in range(2):
            acc = ACC + 4*p
            c = "0" if st == 0 else f"v[{acc}:{acc+3}]"
            a(f"v_mfma_f32_16x16x32_bf16 v[{acc}:{acc+3}], v[{AF(p,0,st)}:{AF(p,0,st)+3}], v[{GC+4*st}:{GC+4*st+3}], {c}")
        for p in range(2):
            acc = ACC + 4*p
            a(f"v_mfma_f32_16x16x32_bf16 v[{acc}:{acc+3}], v[{AF(p,1,st)}:{AF(p,1,st)+3}], v[{GS+4*st}:{GS+4*st+3}], v[{acc}:{acc+3}]")
    if HACK:
        for r in range(8): a(f"ds_bpermute_b32 v{80+r}, v120, v{ACC+r}")
        ACC = 80
    stamp(a, 4)
    a("s_waitcnt vmcnt(0)")
    stamp(a, 5)
    if own:
        for k in range(1, 5):
            for h in range(2):
                a(f"v_pk_add_f32 v[{132+2*h}:{133+2*h}], v[{132+2*h}:{133+2*h}], v[{132+4*k+2*h}:{133+4*k+2*h}]")
                a(f"v_pk_add_f32 v[{152+2*h}:{153+2*h}], v[{152+2*h}:{153+2*h}], v[{152+4*k+2*h}:{153+4*k+2*h}]")
        R8 = [132, 133, 134, 135, 152, 153, 154, 155]
        for r in R8: a(f"v_add_f32 v{r}, v{r}, v{r} row_ror:8 row_mask:0xf bank_mask:0xf")
        for m in ("quad_perm:[1,0,3,2]", "quad_perm:[2,3,0,1]", "row_half_mirror", "row_mirror"):
            a(f"v_add_f32 v172, v172, v172 {m} row_mask:0xf bank_mask:0xf")
        reduce_hi(a, R8 + [172], list(range(136, 145)))
        a(f"""v_lshlrev_b32 v131, 4, v{vL}
        s_mov_b64 s[52:53], exec
        s_mov_b64 exec, 0xff""")
        for j in range(4):
            a(f"ds_add_f32 v131, v{132+j} offset:{YB+4*j}")
            a(f"ds_add_f32 v131, v{152+j} offset:{YB+128+4*j}")
        a(f"""s_mov_b64 exec, 1
        ds_add_f32 v131, v172 offset:{YB+256}
        s_mov_b64 exec, s[52:53]
        v_lshlrev_b32 v131, 5, v{vG}
        v_sub_u32 v130, 96, v131
        v_mov_b32 v129, 0
        v_mov_b32 v173, s45
        v_mul_f32 v173, {fl(-1.4426950408889634)}, v173
        v_exp_f32 v173, v173
        v_add_f32 v173, 1.0, v173
        v_rcp_f32 v173, v173
        v_cmp_eq_u32 vcc, s44, v{vT}
        v_cndmask_b32 v174, 0, v173, vcc
        v_cmp_eq_u32 vcc, s44, v{vTM}
        v_cndmask_b32 v175, 0, v173, vcc
        s_waitcnt lgkmcnt(0)
        s_barrier
        ds_read_b128 v[132:135], v131 offset:{YB}
        ds_read_b128 v[136:139], v131 offset:{YB+16}
        ds_read_b128 v[152:155], v130 offset:{YB+128}
        ds_read_b128 v[156:159], v130 offset:{YB+128+16}
        ds_read_b32 v172, v129 offset:{YB+256}
        s_waitcnt lgkmcnt(0)""")
    a(f"""v_mul_f32 v32, v32, v33
    v_add_f32 v33, 1.0, v33
    v_mul_f32 v34, v34, v35
    v_add_f32 v35, 1.0, v35""")
    if HACK and not own: a("s_waitcnt lgkmcnt(0)")
    for p in range(2):
        for h in range(2):
            s_ = ACC + 4*p + 2*h
            a(f"v_pk_add_f32 v[{40+4*p+2*h}:{41+4*p+2*h}], v[{s_}:{s_+1}], v[32:33] op_sel_hi:[1,0] neg_lo:[0,1] neg_hi:[0,1]")
            a(f"v_pk_add_f32 v[{48+4*p+2*h}:{49+4*p+2*h}], v[{s_}:{s_+1}], v[34:35] op_sel_hi:[1,0] neg_lo:[0,1] neg_hi:[0,1]")
    if own:
        for k in range(8):
            a(f"v_fmac_f32 v{40+(k&1)*4+(k>>1)}, v{132+k}, v174")
            kk = 7 - k
            a(f"v_fmac_f32 v{48+(kk&1)*4+(kk>>1)}, v{152+k}, v175")
    for i in range(4):
        a(f"v_lshlrev_b32 v56, 16, v{24+i}")
        a(f"v_and_b32 v57, 0xffff0000, v{24+i}")
        a(f"v_fma_f32 v56, v56, v33, v{40+i}")
        a(f"v_fma_f32 v57, v57, v33, v{44+i}")
        a(f"v_cvt_pk_bf16_f32 v{64+i}, v56, v57")
    for i in range(4):
        a(f"v_lshlrev_b32 v58, 16, v{28+i}")
        a(f"v_and_b32 v59, 0xffff0000, v{28+i}")
        a(f"v_fma_f32 v58, v58, v35, v{48+4+3-i}")
        a(f"v_fma_f32 v59, v59, v35, v{48+3-i}")
        a(f"v_cvt_pk_bf16_f32 v{68+i}, v58, v59")
    a(f"""buffer_store_dwordx4 v[64:67], v20, s[{SO}:{SO+3}], 0 offen{OST}
    buffer_store_dwordx4 v[68:71], v21, s[{SO}:{SO+3}], 0 offen{OST}""")
    a(f"""s_cmp_eq_u32 s{sB}, 0
    s_cbranch_scc0 {L}_done
    v_lshlrev_b32 v37, 16, v37
    v_fma_f32 v37, v37, v33, -v32
    {"v_fmac_f32 v37, v172, v174" if own else ""}
    v_cvt_pk_bf16_f32 v37, v37, v37
    {"s_mov_b32 exec_lo, 0x11111111" if HACK else "s_mov_b64 exec, 0xffff"}
    {"s_mov_b32 exec_hi, 0x11111111" if HACK else ""}
    buffer_store_short v37, v36, s[{SO}:{SO+3}], 0 offen""")
    a.label(f"{L}_done")
```

```python
from asmlib import *
import math
WS_V = 0
WS_STATS = 0x240000
WS_KEYS = 0x248000
WS_PART = 0x250000
XBYTES = 2048*1152
WSBYTES = 0x10000000

def fl(x):
    import struct
    return "0x%08x" % struct.unpack("<I", struct.pack("<f", x))[0]

WS_STAMP = 0x300000
STAMPS = False
HWID = False
QUIET = False
VST = ""
WLDS = False
XLDS = False
XCO = False
VCO = False
XB0 = 18496
def stamp(a, j):
    if STAMPS: a(f"s_memrealtime s[{64+2*j}:{65+2*j}]")
def stamp_init(a):
    if STAMPS:
        for j in range(16): a(f"s_mov_b32 s{64+j}, 0")
def stamp_flush(a, kern, nst=8, swg="s2", wsptr=8, tid=0):
    if not STAMPS: return
    if HWID: a("""s_getreg_b32 s76, hwreg(HW_REG_HW_ID)
    s_getreg_b32 s77, hwreg(HW_REG_XCC_ID)
    s_or_b32 s77, s77, 0x100""")
    a(f"""s_mov_b64 exec, -1
    s_waitcnt vmcnt(0)
    s_memrealtime s[78:79]
    s_mov_b32 s92, s{wsptr}
    s_mov_b32 s93, s{wsptr+1}
    s_mov_b32 s94, 0x400000
    s_mov_b32 s95, 0x00020000
    s_add_u32 s96, {swg}, {kern*512}
    s_mul_i32 s96, s96, {nst*8}
    s_add_u32 s96, s96, {WS_STAMP}
    s_waitcnt lgkmcnt(0)
    v_mov_b32 v253, s96
    v_mov_b32 v254, {tid}
    v_cmp_eq_u32 s[98:99], v254, v0
    s_and_saveexec_b64 s[96:97], s[98:99]""")
    for j in range(8):
        a(f"""v_mov_b32 v254, s{64+2*j}
        v_mov_b32 v255, s{65+2*j}
        buffer_store_dwordx2 v[254:255], v253, s[92:95], 0 offen offset:{8*j}
        s_nop 1""")
    a("s_mov_b64 exec, s[96:97]")

def srd(a, dst, ptr, nbytes):
    a(f"""s_mov_b32 s{dst}, s{ptr}
    s_mov_b32 s{dst+1}, s{ptr+1}
    s_mov_b32 s{dst+2}, {nbytes}
    s_mov_b32 s{dst+3}, 0x00020000""")

def cheb_group(a, T, th0, dl, c2, n, cosdst, sindst):
    a(f"v_cos_f32 v{T}, v{th0}")
    a(f"v_sin_f32 v{T+1}, v{th0}")
    a(f"v_add_f32 v{th0}, v{th0}, v{dl}")
    a(f"v_cos_f32 v{T+2}, v{th0}")
    a(f"v_sin_f32 v{T+3}, v{th0}")
    for j in range(2, n):
        a(f"v_pk_fma_f32 v[{T+2*j}:{T+2*j+1}], v[{c2}:{c2+1}], v[{T+2*j-2}:{T+2*j-1}], v[{T+2*j-4}:{T+2*j-3}] op_sel_hi:[0,1,1] neg_lo:[0,0,1] neg_hi:[0,0,1]")
    for i in range(n//2):
        a(f"v_cvt_pk_bf16_f32 v{cosdst+i}, v{T+4*i}, v{T+4*i+2}")
        a(f"v_cvt_pk_bf16_f32 v{sindst+i}, v{T+4*i+1}, v{T+4*i+3}")

def unpack_fwd(a, dst, src):
    a(f"v_lshlrev_b32 v{dst}, 16, v{src}")
    a(f"v_and_b32 v{dst+1}, 0xffff0000, v{src}")
def unpack_rev(a, dst, src):
    a(f"v_and_b32 v{dst}, 0xffff0000, v{src}")
    a(f"v_lshlrev_b32 v{dst+1}, 16, v{src}")

def reduce_ag(a, r, t):
    a(f"v_add_f32 v{r}, v{r}, v{r} row_ror:8 row_mask:0xf bank_mask:0xf")
def reduce_hi(a, regs, tmps):
    for r, t in zip(regs, tmps): a(f"v_mov_b32 v{t}, v{r}")
    for r, t in zip(regs, tmps): a(f"v_permlane16_swap_b32 v{r}, v{t}")
    for r, t in zip(regs, tmps): a(f"v_add_f32 v{r}, v{r}, v{t}")
    for r, t in zip(regs, tmps): a(f"v_mov_b32 v{t}, v{r}")
    for r, t in zip(regs, tmps): a(f"v_permlane32_swap_b32 v{r}, v{t}")
    for r, t in zip(regs, tmps): a(f"v_add_f32 v{r}, v{r}, v{t}")

def phase1(a, L, stat=True):
    SX, SW, SWS = 12, 16, 20
    sS2, sQ, sP, sH, sWv = 24, 25, 26, 27, 28
    srd(a, SX, 4, XBYTES); srd(a, SW, 6, 1152); srd(a, SWS, 8, 0x400000)
    if QUIET:
        a(f"""s_lshr_b32 s29, s2, 3
        s_mul_i32 s31, s29, 43
        s_lshr_b32 s31, s31, 7
        s_mul_i32 s30, s31, 3
        s_sub_u32 s{sQ}, s29, s30
        s_sub_u32 s30, s29, 24
        s_cmp_ge_u32 s29, 24
        s_cselect_b32 s31, s30, s31
        s_cselect_b32 s{sQ}, 3, s{sQ}
        s_and_b32 s30, s2, 7
        s_lshl_b32 s30, s30, 3
        s_add_u32 s{sS2}, s30, s31""")
    else:
        a(f"""s_lshr_b32 s29, s2, 3
        s_and_b32 s30, s2, 7
        s_lshl_b32 s30, s30, 3
        s_lshr_b32 s31, s29, 2
        s_add_u32 s{sS2}, s30, s31
        s_and_b32 s{sQ}, s29, 3""")
    a(f"""s_and_b32 s{sP}, s{sQ}, 1
    s_lshr_b32 s{sH}, s{sQ}, 1
    v_lshrrev_b32 v5, 6, v0
    v_readfirstlane_b32 s{sWv}, v5
    v_and_b32 v5, 63, v0""")
    vL, vP, vQ, vP2, vQ2 = 5, 1, 2, 3, 4
    X = lambda i, k: 8 + i*16 + k*4
    W = lambda i, k: 56 + i*16 + k*4
    vRR, vAG = 204, 205
    a(f"""v_and_b32 v{vRR}, 7, v{vL}
    v_lshrrev_b32 v{vAG}, 3, v{vL}
    s_lshl_b32 s29, s{sWv}, 9
    s_add_u32 s29, s29, s{sS2}
    v_lshlrev_b32 v206, 6, v{vRR}
    v_add_u32 v206, s29, v206""")
    vROW = 206
    a(f"""s_movk_i32 s29, 1152
    v_mul_lo_u32 v207, v{vROW}, s29
    v_lshlrev_b32 v208, 4, v{vAG}
    v_add_u32 v{vP}, v207, v208
    v_sub_u32 v{vQ}, v207, v208
    v_add_u32 v{vQ}, 304, v{vQ}
    v_cmp_gt_u32 vcc, 2, v{vAG}
    v_mov_b32 v209, 0x7ff00000
    v_cndmask_b32 v{vP2}, v209, v{vP}, vcc
    v_cndmask_b32 v{vQ2}, v209, v{vQ}, vcc""")
    if stat: a(f"""s_cmp_eq_u32 s{sQ}, 3
    s_cbranch_scc0 {L}_now""")
    if WLDS:
        a(f"""s_mul_i32 s29, s{sWv}, 1152
        s_add_u32 s29, s29, {XB0 + 4*9216}
        s_mov_b32 m0, s29
        v_lshlrev_b32 v210, 4, v{vL}
        buffer_load_dwordx4 v210, s[{SW}:{SW+3}], 0 offen lds
        s_mov_b64 exec, 0xff
        buffer_load_dwordx4 v210, s[{SW}:{SW+3}], 0 offen offset:1024 lds
        s_mov_b64 exec, -1
        v_add_u32 v211, s29, v208
        v_sub_u32 v212, {7*16}, v208
        v_add_u32 v212, s29, v212""")
    else:
        if stat: a(f"""v_sub_u32 v210, 304, v208
        v_cndmask_b32 v211, v209, v208, vcc
        v_cndmask_b32 v212, v209, v210, vcc""")
        for i in (range(3) if stat else []):
            p_, q_ = (208, 210) if i < 2 else (211, 212)
            a(f"buffer_load_dwordx4 v[{W(i,0)}:{W(i,0)+3}], v{p_}, s[{SW}:{SW+3}], 0 offen offset:{128*i}")
            a(f"buffer_load_dwordx4 v[{W(i,1)}:{W(i,1)+3}], v{q_}, s[{SW}:{SW+3}], 0 offen offset:{832-128*i}")
            a(f"buffer_load_dwordx4 v[{W(i,2)}:{W(i,2)+3}], v{q_}, s[{SW}:{SW+3}], 0 offen offset:{256-128*i}")
            a(f"buffer_load_dwordx4 v[{W(i,3)}:{W(i,3)+3}], v{p_}, s[{SW}:{SW+3}], 0 offen offset:{576+128*i}")
    a.label(f"{L}_now")
    if XLDS:
        a(f"""s_mul_i32 s29, s{sWv}, 9216
        s_add_u32 s29, s29, {XB0}""")
        if XCO:
            a(f"""s_lshl_b32 s30, s{sWv}, 9
            s_add_u32 s30, s30, s{sS2}
            v_lshlrev_b32 v{vP}, 6, v{vAG}
            v_add_u32 v{vP}, s30, v{vP}
            s_movk_i32 s30, 1152
            v_mul_lo_u32 v{vP}, v{vP}, s30
            v_xor_b32 v{vQ}, v{vRR}, v{vAG}
            v_lshl_add_u32 v{vP}, v{vQ}, 4, v{vP}""")
        for j in (0, 8, 4, 3, 5, 1, 7, 2, 6):
            a(f"""s_add_u32 m0, s29, {896*j}
            s_nop 0
            buffer_load_dwordx4 v{vP}, s[{SX}:{SX+3}], 0 offen offset:{128*j} lds""")
        if XCO:
            a(f"""v_lshlrev_b32 v209, 7, v{vRR}
            v_add_u32 v209, s29, v209
            v_xor_b32 v210, v{vAG}, v{vRR}
            v_lshl_add_u32 v3, v210, 4, v209
            v_xor_b32 v210, 7, v210
            v_lshl_add_u32 v2, v210, 4, v209
            v_xor_b32 v210, 4, v210
            v_lshl_add_u32 v1, v210, 4, v209
            v_xor_b32 v210, 7, v210
            v_lshl_add_u32 v4, v210, 4, v209
            v_lshrrev_b32 v210, 2, v{vAG}
            v_lshlrev_b32 v210, 10, v210
            v_sub_u32 v1, v1, v210
            v_add_u32 v4, v4, v210""")
        if not XCO: a(f"""v_lshlrev_b32 v{vP2}, 4, v{vRR}
        v_add_u32 v{vP2}, s29, v{vP2}
        v_lshlrev_b32 v{vQ2}, 7, v{vAG}
        v_sub_u32 v{vQ}, {7*128}, v{vQ2}
        v_add_u32 v{vQ}, v{vQ}, v{vP2}
        v_add_u32 v{vP2}, v{vQ2}, v{vP2}""")
        for r in range(40, 56): a(f"v_mov_b32 v{r}, 0")
    else:
        for i in range(3):
            p_, q_ = (vP, vQ) if i < 2 else (vP2, vQ2)
            a(f"buffer_load_dwordx4 v[{X(i,0)}:{X(i,0)+3}], v{p_}, s[{SX}:{SX+3}], 0 offen offset:{128*i}")
            a(f"buffer_load_dwordx4 v[{X(i,1)}:{X(i,1)+3}], v{q_}, s[{SX}:{SX+3}], 0 offen offset:{832-128*i}")
            a(f"buffer_load_dwordx4 v[{X(i,2)}:{X(i,2)+3}], v{q_}, s[{SX}:{SX+3}], 0 offen offset:{256-128*i}")
            a(f"buffer_load_dwordx4 v[{X(i,3)}:{X(i,3)+3}], v{p_}, s[{SX}:{SX+3}], 0 offen offset:{576+128*i}")
    stamp(a, 1)
    vN, vG = 213, 214
    a(f"""v_and_b32 v{vN}, 15, v{vL}
    v_lshrrev_b32 v{vG}, 4, v{vL}""")
    HB = [104, 140]
    BETA = [200, 202]
    T = 216
    vFE, vTH, vDL, vC2, vU, vUt, vST = 232, 233, 234, 236, 238, 239, 240
    a(f"""v_cvt_f32_u32 v{vU}, v{vG}
    v_mov_b32 v{vUt}, {fl(257/1152)}
    v_mov_b32 v241, {fl(8/1152)}
    v_fmac_f32 v{vUt}, v{vU}, v241
    v_mov_b32 v241, {fl(16/1152)}
    v_mov_b32 v242, {fl(1/1152)}
    v_fma_f32 v{vU}, v{vU}, v241, v242""")
    def hidden(tile, sblk):
        a(f"""s_lshl_b32 s29, s{sblk}, 5
        s_add_u32 s29, s29, s{sP}
        s_add_u32 s29, s29, 1
        v_lshlrev_b32 v{vFE}, 1, v{vN}
        v_add_u32 v{vFE}, s29, v{vFE}
        v_cvt_f32_u32 v{vFE}, v{vFE}
        v_mul_f32 v{vDL}, {fl(1/576)}, v{vFE}
        v_mul_f32 v{vTH}, {fl(1/1152)}, v{vFE}
        v_cos_f32 v{vC2}, v{vDL}
        v_cos_f32 v{BETA[tile]}, v{vTH}
        v_sin_f32 v{BETA[tile]+1}, v{vTH}
        v_mul_f32 v{vST}, {fl(64/1152)}, v{vFE}
        v_add_f32 v{vC2}, v{vC2}, v{vC2}
        v_mul_f32 v241, v{vFE}, v{vU}""")
        for st in range(4):
            a(f"v_mov_b32 v{vTH}, v241")
            cheb_group(a, T, vTH, vDL, vC2, 8, HB[tile] + 4*st, HB[tile] + 18 + 4*st)
            if st < 3: a(f"v_add_f32 v241, v241, v{vST}")
        a(f"v_mul_f32 v{vTH}, v{vFE}, v{vUt}")
        cheb_group(a, T, vTH, vDL, vC2, 4, HB[tile] + 16, HB[tile] + 34)
    sB0, sB1 = 32, 33
    a(f"""s_mul_i32 s{sB0}, s{sH}, 5
    s_add_u32 s{sB0}, s{sB0}, s{sWv}
    s_movk_i32 s{sB1}, 4""")
    hidden(0, sB0)
    a(f"""s_lshl_b32 s34, s{sH}, 2
    s_or_b32 s34, s34, s{sWv}
    s_cmp_eq_u32 s34, 0
    s_cbranch_scc0 {L}_no2""")
    hidden(1, sB1)
    a.label(f"{L}_no2")
    FB = 176
    a(f"""v_and_b32 v243, 1, v{vN}
    v_mul_u32_u24 v243, 0x8000, v243
    v_lshlrev_b32 v244, 16, v243
    v_or_b32 v243, v243, v244
    v_mov_b32 v244, 0x80008000
    v_lshlrev_b32 v245, 8, v{vG}
    v_add_u32 v245, s{sS2}, v245
    v_cvt_f32_u32 v245, v245
    v_mul_f32 v245, {fl(1/2048)}, v245""")
    for tt in range(2):
        cb, sb, nb = FB + tt*12, FB + tt*12 + 4, FB + tt*12 + 8
        a(f"""v_add_u32 v{vFE}, {16*tt}, v{vN}
        v_cvt_f32_u32 v{vFE}, v{vFE}
        v_mul_f32 v{vDL}, {fl(1/32)}, v{vFE}
        v_mul_f32 v{vTH}, v{vFE}, v245
        v_cos_f32 v{vC2}, v{vDL}
        s_nop 0
        v_add_f32 v{vC2}, v{vC2}, v{vC2}""")
        cheb_group(a, T, vTH, vDL, vC2, 4, cb, sb)
        a(f"""v_xor_b32 v{cb+2}, v{cb}, v243
        v_xor_b32 v{cb+3}, v{cb+1}, v243
        v_xor_b32 v{sb+2}, v{sb}, v243
        v_xor_b32 v{sb+3}, v{sb+1}, v243""")
        for i in range(4): a(f"v_xor_b32 v{nb+i}, v{sb+i}, v244")
    vWA, vWT = 246, 247
    a(f"""s_lshr_b32 s29, s{sWv}, 1
    s_mul_i32 s29, s29, 4608
    s_and_b32 s30, s{sWv}, 1
    s_lshl_b32 s30, s30, 3
    v_add_u32 v248, s30, v{vRR}
    v_lshrrev_b32 v249, 2, v{vAG}
    v_lshlrev_b32 v249, 10, v249
    v_and_b32 v250, 3, v{vAG}
    v_lshlrev_b32 v250, 8, v250
    v_add_u32 v249, v249, v250
    v_lshlrev_b32 v250, 4, v248
    v_add3_u32 v{vWA}, v249, v250, s29
    v_lshlrev_b32 v249, 8, v{vAG}
    v_lshlrev_b32 v250, 3, v248
    v_add3_u32 v{vWT}, v249, v250, s29""")
    stamp(a, 2)
    vSUM, vSQ, vDOT, vSW = 216, 217, 218, 219
    a(f"""v_mov_b32 v{vSUM}, 0
    v_mov_b32 v{vSQ}, 0
    v_mov_b32 v{vDOT}, 0
    v_mov_b32 v{vSW}, 0
    s_mov_b32 s35, 0x3f803f80""")
    if stat: a(f"""s_cmp_eq_u32 s{sQ}, 3
    s_cbranch_scc1 {L}_st3""")
    def xreads(i):
        vA, vB = vP2, vQ
        if i == 2: a("s_mov_b64 exec, 0xffff")
        a(f"ds_read_b128 v[{X(i,0)}:{X(i,0)+3}], v{vA} offset:{1024*i}")
        a(f"ds_read_b128 v[{X(i,1)}:{X(i,1)+3}], v{vB} offset:{8192-1024*i}")
        if XCO:
            a(f"ds_read_b128 v[{X(i,2)}:{X(i,2)+3}], v1 offset:{4096-1024*i}")
            a(f"ds_read_b128 v[{X(i,3)}:{X(i,3)+3}], v4 offset:{4096+1024*i}")
        else:
            a(f"ds_read_b128 v[{X(i,2)}:{X(i,2)+3}], v{vB} offset:{3584-1024*i}")
            a(f"ds_read_b128 v[{X(i,3)}:{X(i,3)+3}], v{vA} offset:{4608+1024*i}")
        if i == 2: a("s_mov_b64 exec, -1")
    def dots(i, q3):
        for r in range(8+16*i, 24+16*i):
            if q3: a(f"v_dot2_f32_bf16 v{vDOT}, v{r}, v{r+48}, v{vDOT}")
            a(f"v_dot2_f32_bf16 v{vSUM}, v{r}, s35, v{vSUM}")
            a(f"v_dot2_f32_bf16 v{vSQ}, v{r}, v{r}, v{vSQ}")
    def stats_body(q3):
        if XLDS:
            a("s_waitcnt vmcnt(4)"); xreads(0); a("s_waitcnt lgkmcnt(0)"); dots(0, q3)
            a("s_waitcnt vmcnt(0)"); xreads(1); xreads(2)
            a("s_waitcnt lgkmcnt(0)"); dots(1, q3); dots(2, q3)
        else:
            for i in range(3):
                a(f"s_waitcnt vmcnt({8-4*i})"); dots(i, q3)
    stats_body(False)
    if stat:
      a(f"s_branch {L}_st")
      a.label(f"{L}_st3")
      a(f"s_waitcnt vmcnt({9 if XLDS else 12})")
      if WLDS:
        for r in range(88, 104): a(f"v_mov_b32 v{r}, 0")
        for i in range(3):
            if i == 2: a("s_mov_b64 exec, 0xffff")
            a(f"ds_read_b128 v[{W(i,0)}:{W(i,0)+3}], v211 offset:{128*i}")
            a(f"ds_read_b128 v[{W(i,1)}:{W(i,1)+3}], v212 offset:{1024-128*i}")
            a(f"ds_read_b128 v[{W(i,2)}:{W(i,2)+3}], v212 offset:{448-128*i}")
            a(f"ds_read_b128 v[{W(i,3)}:{W(i,3)+3}], v211 offset:{576+128*i}")
        a("s_mov_b64 exec, -1")
        a("s_waitcnt lgkmcnt(0)")
      for r in range(8, 56):
        a(f"v_dot2_f32_bf16 v{vSW}, v{r+48}, s35, v{vSW}")
      stats_body(True)
    a.label(f"{L}_st")
    stamp(a, 3)
    regs = [vSUM, vSQ, vDOT, vSW]; tm = [220, 221, 222, 223]
    if not stat: regs = regs[:2]; tm = tm[:2]
    for r in regs: a(f"v_add_f32 v{r}, v{r}, v{r} row_ror:8 row_mask:0xf bank_mask:0xf")
    reduce_hi(a, regs, tm)
    vM, vRS = 224, 226
    a(f"""v_mul_f32 v{vM}, {fl(1/576)}, v{vSUM}
    v_mul_f32 v{vSQ}, {fl(1/576)}, v{vSQ}
    v_fma_f32 v{vSQ}, -v{vM}, v{vM}, v{vSQ}
    v_max_f32 v{vSQ}, 0, v{vSQ}
    v_add_f32 v{vSQ}, {fl(1e-5)}, v{vSQ}
    v_rsq_f32 v{vRS}, v{vSQ}
    s_cmp_eq_u32 s{sP}, 1
    s_cselect_b32 s29, 1.0, -1.0
    s_cselect_b32 s30, -4.0, 0
    v_mul_f32 v{vRS+1}, s29, v{vRS}
    v_mul_f32 v228, v{vM}, v{vRS}
    v_mul_f32 v228, s30, v228""")
    if stat: a(f"""s_cmp_eq_u32 s{sQ}, 3
    s_cbranch_scc0 {L}_nost
    v_fma_f32 v{vDOT}, -v{vM}, v{vSW}, v{vDOT}
    v_mul_f32 v{vDOT}, v{vDOT}, v{vRS}
    v_mov_b32 v220, v{vM}
    v_mov_b32 v221, v{vRS}
    v_mov_b32 v222, v{vDOT}
    v_mov_b32 v223, 0
    v_and_b32 v230, 31, v{vROW}
    v_lshrrev_b32 v225, 5, v{vROW}
    v_lshl_add_u32 v230, v230, 6, v225
    v_lshlrev_b32 v230, 3, v230
    v_add_u32 v230, {WS_STATS}, v230
    v_ashrrev_i32 v231, 31, v{vDOT}
    v_or_b32 v231, 0x80000000, v231
    v_xor_b32 v231, v231, v{vDOT}
    v_and_b32 v231, 0xfffff800, v231
    v_sub_u32 v225, 2047, v{vROW}
    v_or_b32 v231, v231, v225
    v_max_u32 v231, v231, v231 quad_perm:[1,0,3,2] row_mask:0xf bank_mask:0xf
    v_max_u32 v231, v231, v231 quad_perm:[2,3,0,1] row_mask:0xf bank_mask:0xf
    v_max_u32 v231, v231, v231 row_half_mirror row_mask:0xf bank_mask:0xf
    s_lshl_b32 s29, s{sWv}, 2
    v_mov_b32 v225, s29
    ds_write_b32 v225, v231 offset:18432
    s_mov_b64 s[36:37], exec
    s_mov_b64 exec, 0xff
    buffer_store_dwordx2 v[220:221], v230, s[{SWS}:{SWS+3}], 0 offen
    s_mov_b64 exec, s[36:37]
    s_waitcnt lgkmcnt(0)
    s_barrier
    s_cmp_eq_u32 s{sWv}, 0
    s_cbranch_scc0 {L}_nost
    v_mov_b32 v252, 0
    ds_read_b128 v[248:251], v252 offset:18432
    s_mov_b32 s44, s42
    s_mov_b32 s45, s43
    s_mov_b32 s46, 256
    s_mov_b32 s47, 0x00020000
    s_lshl_b32 s29, s{sS2}, 2
    v_mov_b32 v252, s29
    s_waitcnt lgkmcnt(0)
    v_max_u32 v248, v248, v249
    v_max_u32 v250, v250, v251
    v_max_u32 v248, v248, v250
    s_mov_b64 exec, 1
    buffer_store_dword v248, v252, s[44:47], 0 offen sc1
    s_mov_b64 exec, s[36:37]""")
    a.label(f"{L}_nost")
    stamp(a, 4)
    Pf, Qf, Rf, Uf = 56, 64, 72, 80
    CO, SO = 88, 92
    for i in range(3):
        for j in range(4):
            unpack_fwd(a, Pf + 2*j, X(i, 0) + j)
            unpack_rev(a, Qf + 2*j, X(i, 1) + 3 - j)
            unpack_rev(a, Rf + 2*j, X(i, 2) + 3 - j)
            unpack_fwd(a, Uf + 2*j, X(i, 3) + j)
        for j in range(4):
            p_, q_, r_, u_ = Pf+2*j, Qf+2*j, Rf+2*j, Uf+2*j
            t0, t1 = 96, 98
            a(f"v_pk_add_f32 v[{t0}:{t0+1}], v[{p_}:{p_+1}], v[{q_}:{q_+1}]")
            a(f"v_pk_add_f32 v[{p_}:{p_+1}], v[{p_}:{p_+1}], v[{q_}:{q_+1}] neg_lo:[0,1] neg_hi:[0,1]")
            a(f"v_pk_add_f32 v[{t1}:{t1+1}], v[{u_}:{u_+1}], v[{r_}:{r_+1}]")
            a(f"v_pk_add_f32 v[{u_}:{u_+1}], v[{u_}:{u_+1}], v[{r_}:{r_+1}] neg_lo:[0,1] neg_hi:[0,1]")
            a(f"v_pk_fma_f32 v[{t1}:{t1+1}], v[{t1}:{t1+1}], v[{vRS}:{vRS+1}], v[228:229] op_sel:[0,1,0] op_sel_hi:[1,1,0]")
            a(f"v_pk_mul_f32 v[{u_}:{u_+1}], v[{u_}:{u_+1}], v[{vRS}:{vRS+1}] op_sel:[0,1] op_sel_hi:[1,1]")
            a(f"v_pk_fma_f32 v[{t0}:{t0+1}], v[{t0}:{t0+1}], v[{vRS}:{vRS+1}], v[{t1}:{t1+1}] op_sel_hi:[1,0,1]")
            a(f"v_pk_fma_f32 v[{p_}:{p_+1}], v[{p_}:{p_+1}], v[{vRS}:{vRS+1}], v[{u_}:{u_+1}] op_sel_hi:[1,0,1]")
            a(f"v_cvt_pk_bf16_f32 v{CO+j}, v{t0}, v{t0+1}")
            a(f"v_cvt_pk_bf16_f32 v{SO+j}, v{p_}, v{p_+1}")
        if i < 2:
            a(f"ds_write_b128 v{vWA}, v[{CO}:{CO+3}] offset:{2048*i}")
            a(f"ds_write_b128 v{vWA}, v[{SO}:{SO+3}] offset:{2048*i+9216}")
        else:
            a(f"""s_mov_b64 s[36:37], exec
            s_mov_b64 exec, 0xffff
            ds_write_b64 v{vWT}, v[{CO}:{CO+1}] offset:4096
            ds_write_b64 v{vWT}, v[{CO+2}:{CO+3}] offset:{4096+128}
            ds_write_b64 v{vWT}, v[{SO}:{SO+1}] offset:{4096+9216}
            ds_write_b64 v{vWT}, v[{SO+2}:{SO+3}] offset:{4096+128+9216}
            s_mov_b64 exec, s[36:37]""")
    a("s_waitcnt lgkmcnt(0)")
    a("s_barrier")
    stamp(a, 5)
    AF = lambda f, rt, st: 8 + (f*2 + rt)*18 + st*4
    a(f"""v_lshlrev_b32 v1, 4, v{vL}
    v_lshlrev_b32 v2, 3, v{vL}""")
    for st in range(4):
        for f in range(2):
            for rt in range(2):
                a(f"ds_read_b128 v[{AF(f,rt,st)}:{AF(f,rt,st)+3}], v1 offset:{f*9216+rt*4608+st*1024}")
    for f in range(2):
        for rt in range(2):
            a(f"ds_read_b64 v[{AF(f,rt,4)}:{AF(f,rt,4)+1}], v2 offset:{f*9216+rt*4608+4096}")
    vVA = 3
    if VCO:
        a(f"""s_mov_b32 s29, 73728
        v_lshrrev_b32 v205, 2, v{vL}
        v_and_b32 v206, 3, v{vL}
        v_mul_lo_u32 v{vVA}, v205, s29
        v_lshlrev_b32 v4, 4, v206
        s_mul_i32 s30, s{sS2}, 1152
        s_lshl_b32 s31, s{sP}, 6
        s_add_u32 s30, s30, s31
        v_add3_u32 v{vVA}, v{vVA}, v4, s30
        v_add_lshl_u32 v4, v4, v205, 2""")
    else: a(f"""s_mov_b32 s29, 73728
    v_mul_lo_u32 v{vVA}, v{vN}, s29
    v_lshlrev_b32 v4, 4, v{vG}
    s_mul_i32 s30, s{sS2}, 1152
    s_lshl_b32 s31, s{sP}, 6
    s_add_u32 s30, s30, s31
    v_add3_u32 v{vVA}, v{vVA}, v4, s30""")
    ACC = 80
    def tile(t, sblk, first):
        hb = HB[t]
        for st in range(5):
            if first:
                left = 16 + 4 - 4*(st+1) if st < 4 else 0
                a(f"s_waitcnt lgkmcnt({min(left,15)})")
            for f in range(2):
                for rt in range(2):
                    acc = ACC + f*8 + rt*4
                    c = "0" if st == 0 else f"v[{acc}:{acc+3}]"
                    if st < 4:
                        a(f"v_mfma_f32_16x16x32_bf16 v[{acc}:{acc+3}], v[{AF(f,rt,st)}:{AF(f,rt,st)+3}], v[{hb+18*f+4*st}:{hb+18*f+4*st+3}], {c}")
                    else:
                        a(f"v_mfma_f32_16x16x16_bf16 v[{acc}:{acc+3}], v[{AF(f,rt,4)}:{AF(f,rt,4)+1}], v[{hb+18*f+16}:{hb+18*f+17}], {c}")
        B = BETA[t]
        R0 = 96
        for rt in range(2):
            for j in range(2):
                c_ = ACC + rt*4 + 2*j; s_ = ACC + 8 + rt*4 + 2*j; o = R0 + rt*4 + 2*j
                a(f"v_pk_mul_f32 v[{o}:{o+1}], v[{c_}:{c_+1}], v[{B}:{B+1}] op_sel_hi:[1,0]")
                a(f"v_pk_fma_f32 v[{o}:{o+1}], v[{s_}:{s_+1}], v[{B}:{B+1}], v[{o}:{o+1}] op_sel:[0,1,0] op_sel_hi:[1,1,1]")
                a(f"v_pk_mul_f32 v[{s_}:{s_+1}], v[{s_}:{s_+1}], v[{B}:{B+1}] op_sel_hi:[1,0]")
                a(f"v_pk_fma_f32 v[{s_}:{s_+1}], v[{c_}:{c_+1}], v[{B}:{B+1}], v[{s_}:{s_+1}] op_sel:[0,1,0] op_sel_hi:[1,1,1] neg_lo:[1,0,0] neg_hi:[1,0,0]")
        A2C, A2S = 104 - 24, 104 - 20
        A2C, A2S = 80, 84
        for i in range(4): a(f"v_cvt_pk_bf16_f32 v{A2C+i}, v{R0+2*i}, v{R0+2*i+1}")
        for i in range(4): a(f"v_cvt_pk_bf16_f32 v{A2S+i}, v{ACC+8+2*i}, v{ACC+8+2*i+1}")
        O = 88
        for tt in range(2):
            cb, sb, nb = FB + tt*12, FB + tt*12 + 4, FB + tt*12 + 8
            o = O + tt*8
            a(f"v_mfma_f32_16x16x32_bf16 v[{o}:{o+3}], v[{A2C}:{A2C+3}], v[{cb}:{cb+3}], 0")
            a(f"v_mfma_f32_16x16x32_bf16 v[{o+4}:{o+7}], v[{A2C}:{A2C+3}], v[{sb}:{sb+3}], 0")
        for tt in range(2):
            cb, sb, nb = FB + tt*12, FB + tt*12 + 4, FB + tt*12 + 8
            o = O + tt*8
            a(f"v_mfma_f32_16x16x32_bf16 v[{o}:{o+3}], v[{A2S}:{A2S+3}], v[{nb}:{nb+3}], v[{o}:{o+3}]")
            a(f"v_mfma_f32_16x16x32_bf16 v[{o+4}:{o+7}], v[{A2S}:{A2S+3}], v[{cb}:{cb+3}], v[{o+4}:{o+7}]")
        a(f"s_lshl_b32 s29, s{sblk}, 7")
        if VCO:
            for tt in range(2):
                o = O + tt*8; pk = 204 + tt*4
                for i in range(4): a(f"v_cvt_pk_bf16_f32 v{pk+i}, v{o+2*i}, v{o+2*i+1}")
                for i in range(4): a(f"ds_bpermute_b32 v{pk+i}, v4, v{pk+i}")
        for tt in range(2):
            o = O + tt*8; pk = 204 + tt*4
            if VCO: a(f"s_waitcnt lgkmcnt({4-4*tt})")
            else:
                for i in range(4): a(f"v_cvt_pk_bf16_f32 v{pk+i}, v{o+2*i}, v{o+2*i+1}")
            a(f"s_add_u32 s30, s29, {tt*16*73728}")
            a(f"buffer_store_dwordx4 v[{pk}:{pk+3}], v{vVA}, s[{SWS}:{SWS+3}], s30 offen{VST}")
    tile(0, sB0, True)
    stamp(a, 6)
    a(f"""s_cmp_eq_u32 s34, 0
    s_cbranch_scc0 {L}_done""")
    tile(1, sB1, False)
    a.label(f"{L}_done")
```

```python
from asmlib import *
import math
WS_V = 0
WS_STATS = 0x240000
WS_KEYS = 0x248000
WS_PART = 0x250000
XBYTES = 2048*1152
WSBYTES = 0x10000000

def fl(x):
    import struct
    return "0x%08x" % struct.unpack("<I", struct.pack("<f", x))[0]

WS_STAMP = 0x300000
STAMPS = False
HWID = False
QUIET = False
VST = ""
WLDS = False
XLDS = False
XCO = False
LATEX = False
VCO = False
XB0 = 18496
def stamp(a, j):
    if STAMPS: a(f"s_memrealtime s[{64+2*j}:{65+2*j}]")
def stamp_init(a):
    if STAMPS:
        for j in range(16): a(f"s_mov_b32 s{64+j}, 0")
def stamp_flush(a, kern, nst=8, swg="s2", wsptr=8, tid=0):
    if not STAMPS: return
    if HWID: a("""s_getreg_b32 s76, hwreg(HW_REG_HW_ID)
    s_getreg_b32 s77, hwreg(HW_REG_XCC_ID)
    s_or_b32 s77, s77, 0x100""")
    a(f"""s_mov_b64 exec, -1
    s_waitcnt vmcnt(0)
    s_memrealtime s[78:79]
    s_mov_b32 s92, s{wsptr}
    s_mov_b32 s93, s{wsptr+1}
    s_mov_b32 s94, 0x400000
    s_mov_b32 s95, 0x00020000
    s_add_u32 s96, {swg}, {kern*512}
    s_mul_i32 s96, s96, {nst*8}
    s_add_u32 s96, s96, {WS_STAMP}
    s_waitcnt lgkmcnt(0)
    v_mov_b32 v253, s96
    v_mov_b32 v254, {tid}
    v_cmp_eq_u32 s[98:99], v254, v0
    s_and_saveexec_b64 s[96:97], s[98:99]""")
    for j in range(8):
        a(f"""v_mov_b32 v254, s{64+2*j}
        v_mov_b32 v255, s{65+2*j}
        buffer_store_dwordx2 v[254:255], v253, s[92:95], 0 offen offset:{8*j}
        s_nop 1""")
    a("s_mov_b64 exec, s[96:97]")

def srd(a, dst, ptr, nbytes):
    a(f"""s_mov_b32 s{dst}, s{ptr}
    s_mov_b32 s{dst+1}, s{ptr+1}
    s_mov_b32 s{dst+2}, {nbytes}
    s_mov_b32 s{dst+3}, 0x00020000""")

def cheb_group(a, T, th0, dl, c2, n, cosdst, sindst):
    a(f"v_cos_f32 v{T}, v{th0}")
    a(f"v_sin_f32 v{T+1}, v{th0}")
    a(f"v_add_f32 v{th0}, v{th0}, v{dl}")
    a(f"v_cos_f32 v{T+2}, v{th0}")
    a(f"v_sin_f32 v{T+3}, v{th0}")
    for j in range(2, n):
        a(f"v_pk_fma_f32 v[{T+2*j}:{T+2*j+1}], v[{c2}:{c2+1}], v[{T+2*j-2}:{T+2*j-1}], v[{T+2*j-4}:{T+2*j-3}] op_sel_hi:[0,1,1] neg_lo:[0,0,1] neg_hi:[0,0,1]")
    for i in range(n//2):
        a(f"v_cvt_pk_bf16_f32 v{cosdst+i}, v{T+4*i}, v{T+4*i+2}")
        a(f"v_cvt_pk_bf16_f32 v{sindst+i}, v{T+4*i+1}, v{T+4*i+3}")

def unpack_fwd(a, dst, src):
    a(f"v_lshlrev_b32 v{dst}, 16, v{src}")
    a(f"v_and_b32 v{dst+1}, 0xffff0000, v{src}")
def unpack_rev(a, dst, src):
    a(f"v_and_b32 v{dst}, 0xffff0000, v{src}")
    a(f"v_lshlrev_b32 v{dst+1}, 16, v{src}")

def reduce_ag(a, r, t):
    a(f"v_add_f32 v{r}, v{r}, v{r} row_ror:8 row_mask:0xf bank_mask:0xf")
def reduce_hi(a, regs, tmps):
    for r, t in zip(regs, tmps): a(f"v_mov_b32 v{t}, v{r}")
    for r, t in zip(regs, tmps): a(f"v_permlane16_swap_b32 v{r}, v{t}")
    for r, t in zip(regs, tmps): a(f"v_add_f32 v{r}, v{r}, v{t}")
    for r, t in zip(regs, tmps): a(f"v_mov_b32 v{t}, v{r}")
    for r, t in zip(regs, tmps): a(f"v_permlane32_swap_b32 v{r}, v{t}")
    for r, t in zip(regs, tmps): a(f"v_add_f32 v{r}, v{r}, v{t}")

def phase1(a, L, stat=True):
    SX, SW, SWS = 12, 16, 20
    sS2, sQ, sP, sH, sWv = 24, 25, 26, 27, 28
    srd(a, SX, 4, XBYTES); srd(a, SW, 6, 1152); srd(a, SWS, 8, 0x400000)
    if QUIET:
        a(f"""s_lshr_b32 s29, s2, 3
        s_mul_i32 s31, s29, 43
        s_lshr_b32 s31, s31, 7
        s_mul_i32 s30, s31, 3
        s_sub_u32 s{sQ}, s29, s30
        s_sub_u32 s30, s29, 24
        s_cmp_ge_u32 s29, 24
        s_cselect_b32 s31, s30, s31
        s_cselect_b32 s{sQ}, 3, s{sQ}
        s_and_b32 s30, s2, 7
        s_lshl_b32 s30, s30, 3
        s_add_u32 s{sS2}, s30, s31""")
    else:
        a(f"""s_lshr_b32 s29, s2, 3
        s_and_b32 s30, s2, 7
        s_lshl_b32 s30, s30, 3
        s_lshr_b32 s31, s29, 2
        s_add_u32 s{sS2}, s30, s31
        s_and_b32 s{sQ}, s29, 3""")
    a(f"""s_and_b32 s{sP}, s{sQ}, 1
    s_lshr_b32 s{sH}, s{sQ}, 1
    v_lshrrev_b32 v5, 6, v0
    v_readfirstlane_b32 s{sWv}, v5
    v_and_b32 v5, 63, v0""")
    vL, vP, vQ, vP2, vQ2 = 5, 1, 2, 3, 4
    X = lambda i, k: 8 + i*16 + k*4
    W = lambda i, k: 56 + i*16 + k*4
    vRR, vAG = 204, 205
    a(f"""v_and_b32 v{vRR}, 7, v{vL}
    v_lshrrev_b32 v{vAG}, 3, v{vL}
    s_lshl_b32 s29, s{sWv}, 9
    s_add_u32 s29, s29, s{sS2}
    v_lshlrev_b32 v206, 6, v{vRR}
    v_add_u32 v206, s29, v206""")
    vROW = 206
    a(f"""s_movk_i32 s29, 1152
    v_mul_lo_u32 v207, v{vROW}, s29
    v_lshlrev_b32 v208, 4, v{vAG}
    v_add_u32 v{vP}, v207, v208
    v_sub_u32 v{vQ}, v207, v208
    v_add_u32 v{vQ}, 304, v{vQ}
    v_cmp_gt_u32 vcc, 2, v{vAG}
    v_mov_b32 v209, 0x7ff00000
    v_cndmask_b32 v{vP2}, v209, v{vP}, vcc
    v_cndmask_b32 v{vQ2}, v209, v{vQ}, vcc""")
    if stat: a(f"""s_cmp_eq_u32 s{sQ}, 3
    s_cbranch_scc0 {L}_now""")
    if WLDS:
        a(f"""s_mul_i32 s29, s{sWv}, 1152
        s_add_u32 s29, s29, {XB0 + 4*9216}
        s_mov_b32 m0, s29
        v_lshlrev_b32 v210, 4, v{vL}
        buffer_load_dwordx4 v210, s[{SW}:{SW+3}], 0 offen lds
        s_mov_b64 exec, 0xff
        buffer_load_dwordx4 v210, s[{SW}:{SW+3}], 0 offen offset:1024 lds
        s_mov_b64 exec, -1
        v_add_u32 v211, s29, v208
        v_sub_u32 v212, {7*16}, v208
        v_add_u32 v212, s29, v212""")
    else:
        if stat: a(f"""v_sub_u32 v210, 304, v208
        v_cndmask_b32 v211, v209, v208, vcc
        v_cndmask_b32 v212, v209, v210, vcc""")
        for i in (range(3) if stat else []):
            p_, q_ = (208, 210) if i < 2 else (211, 212)
            a(f"buffer_load_dwordx4 v[{W(i,0)}:{W(i,0)+3}], v{p_}, s[{SW}:{SW+3}], 0 offen offset:{128*i}")
            a(f"buffer_load_dwordx4 v[{W(i,1)}:{W(i,1)+3}], v{q_}, s[{SW}:{SW+3}], 0 offen offset:{832-128*i}")
            a(f"buffer_load_dwordx4 v[{W(i,2)}:{W(i,2)+3}], v{q_}, s[{SW}:{SW+3}], 0 offen offset:{256-128*i}")
            a(f"buffer_load_dwordx4 v[{W(i,3)}:{W(i,3)+3}], v{p_}, s[{SW}:{SW+3}], 0 offen offset:{576+128*i}")
    a.label(f"{L}_now")
    def xdma():
        a(f"""s_mul_i32 s29, s{sWv}, 9216
        s_add_u32 s29, s29, {XB0}""")
        if XCO:
            a(f"""s_lshl_b32 s30, s{sWv}, 9
            s_add_u32 s30, s30, s{sS2}
            v_lshlrev_b32 v{vP}, 6, v{vAG}
            v_add_u32 v{vP}, s30, v{vP}
            s_movk_i32 s30, 1152
            v_mul_lo_u32 v{vP}, v{vP}, s30
            v_xor_b32 v{vQ}, v{vRR}, v{vAG}
            v_lshl_add_u32 v{vP}, v{vQ}, 4, v{vP}""")
        for j in (0, 8, 4, 3, 5, 1, 7, 2, 6):
            a(f"""s_add_u32 m0, s29, {896*j}
            s_nop 0
            buffer_load_dwordx4 v{vP}, s[{SX}:{SX+3}], 0 offen offset:{128*j} lds""")
        if XCO:
            a(f"""v_lshlrev_b32 v209, 7, v{vRR}
            v_add_u32 v209, s29, v209
            v_xor_b32 v210, v{vAG}, v{vRR}
            v_lshl_add_u32 v3, v210, 4, v209
            v_xor_b32 v210, 7, v210
            v_lshl_add_u32 v2, v210, 4, v209
            v_xor_b32 v210, 4, v210
            v_lshl_add_u32 v1, v210, 4, v209
            v_xor_b32 v210, 7, v210
            v_lshl_add_u32 v4, v210, 4, v209
            v_lshrrev_b32 v210, 2, v{vAG}
            v_lshlrev_b32 v210, 10, v210
            v_sub_u32 v1, v1, v210
            v_add_u32 v4, v4, v210""")
        if not XCO: a(f"""v_lshlrev_b32 v{vP2}, 4, v{vRR}
        v_add_u32 v{vP2}, s29, v{vP2}
        v_lshlrev_b32 v{vQ2}, 7, v{vAG}
        v_sub_u32 v{vQ}, {7*128}, v{vQ2}
        v_add_u32 v{vQ}, v{vQ}, v{vP2}
        v_add_u32 v{vP2}, v{vQ2}, v{vP2}""")
        for r in range(40, 56): a(f"v_mov_b32 v{r}, 0")
    if XLDS:
        if LATEX:
            a(f"""s_cmp_eq_u32 s{sQ}, 3
            s_cbranch_scc0 {L}_nox""")
            xdma(); a.label(f"{L}_nox")
        else: xdma()
    else:
        for i in range(3):
            p_, q_ = (vP, vQ) if i < 2 else (vP2, vQ2)
            a(f"buffer_load_dwordx4 v[{X(i,0)}:{X(i,0)+3}], v{p_}, s[{SX}:{SX+3}], 0 offen offset:{128*i}")
            a(f"buffer_load_dwordx4 v[{X(i,1)}:{X(i,1)+3}], v{q_}, s[{SX}:{SX+3}], 0 offen offset:{832-128*i}")
            a(f"buffer_load_dwordx4 v[{X(i,2)}:{X(i,2)+3}], v{q_}, s[{SX}:{SX+3}], 0 offen offset:{256-128*i}")
            a(f"buffer_load_dwordx4 v[{X(i,3)}:{X(i,3)+3}], v{p_}, s[{SX}:{SX+3}], 0 offen offset:{576+128*i}")
    stamp(a, 1)
    vN, vG = 213, 214
    a(f"""v_and_b32 v{vN}, 15, v{vL}
    v_lshrrev_b32 v{vG}, 4, v{vL}""")
    HB = [104, 140]
    BETA = [200, 202]
    T = 216
    vFE, vTH, vDL, vC2, vU, vUt, vST = 232, 233, 234, 236, 238, 239, 240
    a(f"""v_cvt_f32_u32 v{vU}, v{vG}
    v_mov_b32 v{vUt}, {fl(257/1152)}
    v_mov_b32 v241, {fl(8/1152)}
    v_fmac_f32 v{vUt}, v{vU}, v241
    v_mov_b32 v241, {fl(16/1152)}
    v_mov_b32 v242, {fl(1/1152)}
    v_fma_f32 v{vU}, v{vU}, v241, v242""")
    def hidden(tile, sblk):
        a(f"""s_lshl_b32 s29, s{sblk}, 5
        s_add_u32 s29, s29, s{sP}
        s_add_u32 s29, s29, 1
        v_lshlrev_b32 v{vFE}, 1, v{vN}
        v_add_u32 v{vFE}, s29, v{vFE}
        v_cvt_f32_u32 v{vFE}, v{vFE}
        v_mul_f32 v{vDL}, {fl(1/576)}, v{vFE}
        v_mul_f32 v{vTH}, {fl(1/1152)}, v{vFE}
        v_cos_f32 v{vC2}, v{vDL}
        v_cos_f32 v{BETA[tile]}, v{vTH}
        v_sin_f32 v{BETA[tile]+1}, v{vTH}
        v_mul_f32 v{vST}, {fl(64/1152)}, v{vFE}
        v_add_f32 v{vC2}, v{vC2}, v{vC2}
        v_mul_f32 v241, v{vFE}, v{vU}""")
        for st in range(4):
            a(f"v_mov_b32 v{vTH}, v241")
            cheb_group(a, T, vTH, vDL, vC2, 8, HB[tile] + 4*st, HB[tile] + 18 + 4*st)
            if st < 3: a(f"v_add_f32 v241, v241, v{vST}")
        a(f"v_mul_f32 v{vTH}, v{vFE}, v{vUt}")
        cheb_group(a, T, vTH, vDL, vC2, 4, HB[tile] + 16, HB[tile] + 34)
    sB0, sB1 = 32, 33
    a(f"""s_mul_i32 s{sB0}, s{sH}, 5
    s_add_u32 s{sB0}, s{sB0}, s{sWv}
    s_movk_i32 s{sB1}, 4""")
    hidden(0, sB0)
    a(f"""s_lshl_b32 s34, s{sH}, 2
    s_or_b32 s34, s34, s{sWv}
    s_cmp_eq_u32 s34, 0
    s_cbranch_scc0 {L}_no2""")
    hidden(1, sB1)
    a.label(f"{L}_no2")
    FB = 176
    a(f"""v_and_b32 v243, 1, v{vN}
    v_mul_u32_u24 v243, 0x8000, v243
    v_lshlrev_b32 v244, 16, v243
    v_or_b32 v243, v243, v244
    v_mov_b32 v244, 0x80008000
    v_lshlrev_b32 v245, 8, v{vG}
    v_add_u32 v245, s{sS2}, v245
    v_cvt_f32_u32 v245, v245
    v_mul_f32 v245, {fl(1/2048)}, v245""")
    for tt in range(2):
        cb, sb, nb = FB + tt*12, FB + tt*12 + 4, FB + tt*12 + 8
        a(f"""v_add_u32 v{vFE}, {16*tt}, v{vN}
        v_cvt_f32_u32 v{vFE}, v{vFE}
        v_mul_f32 v{vDL}, {fl(1/32)}, v{vFE}
        v_mul_f32 v{vTH}, v{vFE}, v245
        v_cos_f32 v{vC2}, v{vDL}
        s_nop 0
        v_add_f32 v{vC2}, v{vC2}, v{vC2}""")
        cheb_group(a, T, vTH, vDL, vC2, 4, cb, sb)
        a(f"""v_xor_b32 v{cb+2}, v{cb}, v243
        v_xor_b32 v{cb+3}, v{cb+1}, v243
        v_xor_b32 v{sb+2}, v{sb}, v243
        v_xor_b32 v{sb+3}, v{sb+1}, v243""")
        for i in range(4): a(f"v_xor_b32 v{nb+i}, v{sb+i}, v244")
    vWA, vWT = 246, 247
    a(f"""s_lshr_b32 s29, s{sWv}, 1
    s_mul_i32 s29, s29, 4608
    s_and_b32 s30, s{sWv}, 1
    s_lshl_b32 s30, s30, 3
    v_add_u32 v248, s30, v{vRR}
    v_lshrrev_b32 v249, 2, v{vAG}
    v_lshlrev_b32 v249, 10, v249
    v_and_b32 v250, 3, v{vAG}
    v_lshlrev_b32 v250, 8, v250
    v_add_u32 v249, v249, v250
    v_lshlrev_b32 v250, 4, v248
    v_add3_u32 v{vWA}, v249, v250, s29
    v_lshlrev_b32 v249, 8, v{vAG}
    v_lshlrev_b32 v250, 3, v248
    v_add3_u32 v{vWT}, v249, v250, s29""")
    if XLDS and LATEX:
        a(f"""s_cmp_eq_u32 s{sQ}, 3
        s_cbranch_scc1 {L}_nox2""")
        xdma(); a.label(f"{L}_nox2")
    stamp(a, 2)
    vSUM, vSQ, vDOT, vSW = 216, 217, 218, 219
    a(f"""v_mov_b32 v{vSUM}, 0
    v_mov_b32 v{vSQ}, 0
    v_mov_b32 v{vDOT}, 0
    v_mov_b32 v{vSW}, 0
    s_mov_b32 s35, 0x3f803f80""")
    if stat: a(f"""s_cmp_eq_u32 s{sQ}, 3
    s_cbranch_scc1 {L}_st3""")
    def xreads(i):
        vA, vB = vP2, vQ
        if i == 2: a("s_mov_b64 exec, 0xffff")
        a(f"ds_read_b128 v[{X(i,0)}:{X(i,0)+3}], v{vA} offset:{1024*i}")
        a(f"ds_read_b128 v[{X(i,1)}:{X(i,1)+3}], v{vB} offset:{8192-1024*i}")
        if XCO:
            a(f"ds_read_b128 v[{X(i,2)}:{X(i,2)+3}], v1 offset:{4096-1024*i}")
            a(f"ds_read_b128 v[{X(i,3)}:{X(i,3)+3}], v4 offset:{4096+1024*i}")
        else:
            a(f"ds_read_b128 v[{X(i,2)}:{X(i,2)+3}], v{vB} offset:{3584-1024*i}")
            a(f"ds_read_b128 v[{X(i,3)}:{X(i,3)+3}], v{vA} offset:{4608+1024*i}")
        if i == 2: a("s_mov_b64 exec, -1")
    def dots(i, q3):
        for r in range(8+16*i, 24+16*i):
            if q3: a(f"v_dot2_f32_bf16 v{vDOT}, v{r}, v{r+48}, v{vDOT}")
            a(f"v_dot2_f32_bf16 v{vSUM}, v{r}, s35, v{vSUM}")
            a(f"v_dot2_f32_bf16 v{vSQ}, v{r}, v{r}, v{vSQ}")
    def stats_body(q3):
        if XLDS:
            a("s_waitcnt vmcnt(4)"); xreads(0); a("s_waitcnt lgkmcnt(0)"); dots(0, q3)
            a("s_waitcnt vmcnt(0)"); xreads(1); xreads(2)
            a("s_waitcnt lgkmcnt(0)"); dots(1, q3); dots(2, q3)
        else:
            for i in range(3):
                a(f"s_waitcnt vmcnt({8-4*i})"); dots(i, q3)
    stats_body(False)
    if stat:
      a(f"s_branch {L}_st")
      a.label(f"{L}_st3")
      a(f"s_waitcnt vmcnt({9 if XLDS else 12})")
      if WLDS:
        for r in range(88, 104): a(f"v_mov_b32 v{r}, 0")
        for i in range(3):
            if i == 2: a("s_mov_b64 exec, 0xffff")
            a(f"ds_read_b128 v[{W(i,0)}:{W(i,0)+3}], v211 offset:{128*i}")
            a(f"ds_read_b128 v[{W(i,1)}:{W(i,1)+3}], v212 offset:{1024-128*i}")
            a(f"ds_read_b128 v[{W(i,2)}:{W(i,2)+3}], v212 offset:{448-128*i}")
            a(f"ds_read_b128 v[{W(i,3)}:{W(i,3)+3}], v211 offset:{576+128*i}")
        a("s_mov_b64 exec, -1")
        a("s_waitcnt lgkmcnt(0)")
      for r in range(8, 56):
        a(f"v_dot2_f32_bf16 v{vSW}, v{r+48}, s35, v{vSW}")
      stats_body(True)
    a.label(f"{L}_st")
    stamp(a, 3)
    regs = [vSUM, vSQ, vDOT, vSW]; tm = [220, 221, 222, 223]
    if not stat: regs = regs[:2]; tm = tm[:2]
    for r in regs: a(f"v_add_f32 v{r}, v{r}, v{r} row_ror:8 row_mask:0xf bank_mask:0xf")
    reduce_hi(a, regs, tm)
    vM, vRS = 224, 226
    a(f"""v_mul_f32 v{vM}, {fl(1/576)}, v{vSUM}
    v_mul_f32 v{vSQ}, {fl(1/576)}, v{vSQ}
    v_fma_f32 v{vSQ}, -v{vM}, v{vM}, v{vSQ}
    v_max_f32 v{vSQ}, 0, v{vSQ}
    v_add_f32 v{vSQ}, {fl(1e-5)}, v{vSQ}
    v_rsq_f32 v{vRS}, v{vSQ}
    s_cmp_eq_u32 s{sP}, 1
    s_cselect_b32 s29, 1.0, -1.0
    s_cselect_b32 s30, -4.0, 0
    v_mul_f32 v{vRS+1}, s29, v{vRS}
    v_mul_f32 v228, v{vM}, v{vRS}
    v_mul_f32 v228, s30, v228""")
    if stat: a(f"""s_cmp_eq_u32 s{sQ}, 3
    s_cbranch_scc0 {L}_nost
    v_fma_f32 v{vDOT}, -v{vM}, v{vSW}, v{vDOT}
    v_mul_f32 v{vDOT}, v{vDOT}, v{vRS}
    v_mov_b32 v220, v{vM}
    v_mov_b32 v221, v{vRS}
    v_mov_b32 v222, v{vDOT}
    v_mov_b32 v223, 0
    v_and_b32 v230, 31, v{vROW}
    v_lshrrev_b32 v225, 5, v{vROW}
    v_lshl_add_u32 v230, v230, 6, v225
    v_lshlrev_b32 v230, 3, v230
    v_add_u32 v230, {WS_STATS}, v230
    v_ashrrev_i32 v231, 31, v{vDOT}
    v_or_b32 v231, 0x80000000, v231
    v_xor_b32 v231, v231, v{vDOT}
    v_and_b32 v231, 0xfffff800, v231
    v_sub_u32 v225, 2047, v{vROW}
    v_or_b32 v231, v231, v225
    v_max_u32 v231, v231, v231 quad_perm:[1,0,3,2] row_mask:0xf bank_mask:0xf
    v_max_u32 v231, v231, v231 quad_perm:[2,3,0,1] row_mask:0xf bank_mask:0xf
    v_max_u32 v231, v231, v231 row_half_mirror row_mask:0xf bank_mask:0xf
    s_lshl_b32 s29, s{sWv}, 2
    v_mov_b32 v225, s29
    ds_write_b32 v225, v231 offset:18432
    s_mov_b64 s[36:37], exec
    s_mov_b64 exec, 0xff
    buffer_store_dwordx2 v[220:221], v230, s[{SWS}:{SWS+3}], 0 offen
    s_mov_b64 exec, s[36:37]
    s_waitcnt lgkmcnt(0)
    s_barrier
    s_cmp_eq_u32 s{sWv}, 0
    s_cbranch_scc0 {L}_nost
    v_mov_b32 v252, 0
    ds_read_b128 v[248:251], v252 offset:18432
    s_mov_b32 s44, s42
    s_mov_b32 s45, s43
    s_mov_b32 s46, 256
    s_mov_b32 s47, 0x00020000
    s_lshl_b32 s29, s{sS2}, 2
    v_mov_b32 v252, s29
    s_waitcnt lgkmcnt(0)
    v_max_u32 v248, v248, v249
    v_max_u32 v250, v250, v251
    v_max_u32 v248, v248, v250
    s_mov_b64 exec, 1
    buffer_store_dword v248, v252, s[44:47], 0 offen sc1
    s_mov_b64 exec, s[36:37]""")
    a.label(f"{L}_nost")
    stamp(a, 4)
    Pf, Qf, Rf, Uf = 56, 64, 72, 80
    CO, SO = 88, 92
    for i in range(3):
        for j in range(4):
            unpack_fwd(a, Pf + 2*j, X(i, 0) + j)
            unpack_rev(a, Qf + 2*j, X(i, 1) + 3 - j)
            unpack_rev(a, Rf + 2*j, X(i, 2) + 3 - j)
            unpack_fwd(a, Uf + 2*j, X(i, 3) + j)
        for j in range(4):
            p_, q_, r_, u_ = Pf+2*j, Qf+2*j, Rf+2*j, Uf+2*j
            t0, t1 = 96, 98
            a(f"v_pk_add_f32 v[{t0}:{t0+1}], v[{p_}:{p_+1}], v[{q_}:{q_+1}]")
            a(f"v_pk_add_f32 v[{p_}:{p_+1}], v[{p_}:{p_+1}], v[{q_}:{q_+1}] neg_lo:[0,1] neg_hi:[0,1]")
            a(f"v_pk_add_f32 v[{t1}:{t1+1}], v[{u_}:{u_+1}], v[{r_}:{r_+1}]")
            a(f"v_pk_add_f32 v[{u_}:{u_+1}], v[{u_}:{u_+1}], v[{r_}:{r_+1}] neg_lo:[0,1] neg_hi:[0,1]")
            a(f"v_pk_fma_f32 v[{t1}:{t1+1}], v[{t1}:{t1+1}], v[{vRS}:{vRS+1}], v[228:229] op_sel:[0,1,0] op_sel_hi:[1,1,0]")
            a(f"v_pk_mul_f32 v[{u_}:{u_+1}], v[{u_}:{u_+1}], v[{vRS}:{vRS+1}] op_sel:[0,1] op_sel_hi:[1,1]")
            a(f"v_pk_fma_f32 v[{t0}:{t0+1}], v[{t0}:{t0+1}], v[{vRS}:{vRS+1}], v[{t1}:{t1+1}] op_sel_hi:[1,0,1]")
            a(f"v_pk_fma_f32 v[{p_}:{p_+1}], v[{p_}:{p_+1}], v[{vRS}:{vRS+1}], v[{u_}:{u_+1}] op_sel_hi:[1,0,1]")
            a(f"v_cvt_pk_bf16_f32 v{CO+j}, v{t0}, v{t0+1}")
            a(f"v_cvt_pk_bf16_f32 v{SO+j}, v{p_}, v{p_+1}")
        if i < 2:
            a(f"ds_write_b128 v{vWA}, v[{CO}:{CO+3}] offset:{2048*i}")
            a(f"ds_write_b128 v{vWA}, v[{SO}:{SO+3}] offset:{2048*i+9216}")
        else:
            a(f"""s_mov_b64 s[36:37], exec
            s_mov_b64 exec, 0xffff
            ds_write_b64 v{vWT}, v[{CO}:{CO+1}] offset:4096
            ds_write_b64 v{vWT}, v[{CO+2}:{CO+3}] offset:{4096+128}
            ds_write_b64 v{vWT}, v[{SO}:{SO+1}] offset:{4096+9216}
            ds_write_b64 v{vWT}, v[{SO+2}:{SO+3}] offset:{4096+128+9216}
            s_mov_b64 exec, s[36:37]""")
    a("s_waitcnt lgkmcnt(0)")
    a("s_barrier")
    stamp(a, 5)
    AF = lambda f, rt, st: 8 + (f*2 + rt)*18 + st*4
    a(f"""v_lshlrev_b32 v1, 4, v{vL}
    v_lshlrev_b32 v2, 3, v{vL}""")
    for st in range(4):
        for f in range(2):
            for rt in range(2):
                a(f"ds_read_b128 v[{AF(f,rt,st)}:{AF(f,rt,st)+3}], v1 offset:{f*9216+rt*4608+st*1024}")
    for f in range(2):
        for rt in range(2):
            a(f"ds_read_b64 v[{AF(f,rt,4)}:{AF(f,rt,4)+1}], v2 offset:{f*9216+rt*4608+4096}")
    vVA = 3
    if VCO:
        a(f"""s_mov_b32 s29, 73728
        v_lshrrev_b32 v205, 2, v{vL}
        v_and_b32 v206, 3, v{vL}
        v_mul_lo_u32 v{vVA}, v205, s29
        v_lshlrev_b32 v4, 4, v206
        s_mul_i32 s30, s{sS2}, 1152
        s_lshl_b32 s31, s{sP}, 6
        s_add_u32 s30, s30, s31
        v_add3_u32 v{vVA}, v{vVA}, v4, s30
        v_add_lshl_u32 v4, v4, v205, 2""")
    else: a(f"""s_mov_b32 s29, 73728
    v_mul_lo_u32 v{vVA}, v{vN}, s29
    v_lshlrev_b32 v4, 4, v{vG}
    s_mul_i32 s30, s{sS2}, 1152
    s_lshl_b32 s31, s{sP}, 6
    s_add_u32 s30, s30, s31
    v_add3_u32 v{vVA}, v{vVA}, v4, s30""")
    ACC = 80
    def tile(t, sblk, first):
        hb = HB[t]
        for st in range(5):
            if first:
                left = 16 + 4 - 4*(st+1) if st < 4 else 0
                a(f"s_waitcnt lgkmcnt({min(left,15)})")
            for f in range(2):
                for rt in range(2):
                    acc = ACC + f*8 + rt*4
                    c = "0" if st == 0 else f"v[{acc}:{acc+3}]"
                    if st < 4:
                        a(f"v_mfma_f32_16x16x32_bf16 v[{acc}:{acc+3}], v[{AF(f,rt,st)}:{AF(f,rt,st)+3}], v[{hb+18*f+4*st}:{hb+18*f+4*st+3}], {c}")
                    else:
                        a(f"v_mfma_f32_16x16x16_bf16 v[{acc}:{acc+3}], v[{AF(f,rt,4)}:{AF(f,rt,4)+1}], v[{hb+18*f+16}:{hb+18*f+17}], {c}")
        B = BETA[t]
        R0 = 96
        for rt in range(2):
            for j in range(2):
                c_ = ACC + rt*4 + 2*j; s_ = ACC + 8 + rt*4 + 2*j; o = R0 + rt*4 + 2*j
                a(f"v_pk_mul_f32 v[{o}:{o+1}], v[{c_}:{c_+1}], v[{B}:{B+1}] op_sel_hi:[1,0]")
                a(f"v_pk_fma_f32 v[{o}:{o+1}], v[{s_}:{s_+1}], v[{B}:{B+1}], v[{o}:{o+1}] op_sel:[0,1,0] op_sel_hi:[1,1,1]")
                a(f"v_pk_mul_f32 v[{s_}:{s_+1}], v[{s_}:{s_+1}], v[{B}:{B+1}] op_sel_hi:[1,0]")
                a(f"v_pk_fma_f32 v[{s_}:{s_+1}], v[{c_}:{c_+1}], v[{B}:{B+1}], v[{s_}:{s_+1}] op_sel:[0,1,0] op_sel_hi:[1,1,1] neg_lo:[1,0,0] neg_hi:[1,0,0]")
        A2C, A2S = 104 - 24, 104 - 20
        A2C, A2S = 80, 84
        for i in range(4): a(f"v_cvt_pk_bf16_f32 v{A2C+i}, v{R0+2*i}, v{R0+2*i+1}")
        for i in range(4): a(f"v_cvt_pk_bf16_f32 v{A2S+i}, v{ACC+8+2*i}, v{ACC+8+2*i+1}")
        O = 88
        for tt in range(2):
            cb, sb, nb = FB + tt*12, FB + tt*12 + 4, FB + tt*12 + 8
            o = O + tt*8
            a(f"v_mfma_f32_16x16x32_bf16 v[{o}:{o+3}], v[{A2C}:{A2C+3}], v[{cb}:{cb+3}], 0")
            a(f"v_mfma_f32_16x16x32_bf16 v[{o+4}:{o+7}], v[{A2C}:{A2C+3}], v[{sb}:{sb+3}], 0")
        for tt in range(2):
            cb, sb, nb = FB + tt*12, FB + tt*12 + 4, FB + tt*12 + 8
            o = O + tt*8
            a(f"v_mfma_f32_16x16x32_bf16 v[{o}:{o+3}], v[{A2S}:{A2S+3}], v[{nb}:{nb+3}], v[{o}:{o+3}]")
            a(f"v_mfma_f32_16x16x32_bf16 v[{o+4}:{o+7}], v[{A2S}:{A2S+3}], v[{cb}:{cb+3}], v[{o+4}:{o+7}]")
        a(f"s_lshl_b32 s29, s{sblk}, 7")
        if VCO:
            for tt in range(2):
                o = O + tt*8; pk = 204 + tt*4
                for i in range(4): a(f"v_cvt_pk_bf16_f32 v{pk+i}, v{o+2*i}, v{o+2*i+1}")
                for i in range(4): a(f"ds_bpermute_b32 v{pk+i}, v4, v{pk+i}")
        for tt in range(2):
            o = O + tt*8; pk = 204 + tt*4
            if VCO: a(f"s_waitcnt lgkmcnt({4-4*tt})")
            else:
                for i in range(4): a(f"v_cvt_pk_bf16_f32 v{pk+i}, v{o+2*i}, v{o+2*i+1}")
            a(f"s_add_u32 s30, s29, {tt*16*73728}")
            a(f"buffer_store_dwordx4 v[{pk}:{pk+3}], v{vVA}, s[{SWS}:{SWS+3}], s30 offen{VST}")
    tile(0, sB0, True)
    stamp(a, 6)
    a(f"""s_cmp_eq_u32 s34, 0
    s_cbranch_scc0 {L}_done""")
    tile(1, sB1, False)
    a.label(f"{L}_done")
```

```python
import sys
sys.path.insert(0, "gen")
from asmlib import *
import k1 as K1M
import k3 as K3M
import k2 as K2M
from k1 import *
from k2 import *
from k3 import *
NAME = "parallel_sum__spectral_fnet__moe_arch_mod__prompt"
HDR = open("cdna_kernels/" + NAME + ".s.ref").read().split("; Override launch")[0]
opts = set(sys.argv[2:])
if "stamps" in opts: K1M.STAMPS = True
if "hwid" in opts: K1M.HWID = True
if "quiet" in opts: K1M.QUIET = True
if "xlds" in opts: K1M.XLDS = True
if "xco" in opts: K1M.XCO = True
if "latex" in opts: K1M.LATEX = True
if "vco" in opts: K1M.VCO = True
if "midown" in opts: K3M.MIDDOWN = True
if "pfnt" in opts: K3M.PFMOD = " nt"
def desc(name, vgpr, sgpr=102):
    acc = (vgpr + 3)//4*4
    return f""".amdhsa_kernel {name}
  .amdhsa_next_free_vgpr {vgpr}
  .amdhsa_next_free_sgpr {sgpr}
  .amdhsa_accum_offset {acc}
  .amdhsa_group_segment_fixed_size 0
  .amdhsa_kernarg_size 104
  .amdhsa_user_sgpr_count 2
  .amdhsa_user_sgpr_kernarg_segment_ptr 1
  .amdhsa_system_sgpr_workgroup_id_x 1
.end_amdhsa_kernel
"""
def kern(name, body):
    return f""".globl {name}
.p2align 8
.type {name},@function
{name}:
{body}
    s_endpgm
"""
def prefetch2(a, sPJ, sWv, vL, dummy):
    a(f"""s_and_b32 s29, s{sPJ}, 7
    s_lshr_b32 s30, s{sPJ}, 3
    s_cmp_eq_u32 s{sWv}, 1
    s_cselect_b32 s44, s38, s36
    s_cselect_b32 s45, s39, s37
    s_cmp_ge_u32 s{sWv}, 2
    s_cselect_b32 s44, s40, s44
    s_cselect_b32 s45, s41, s45
    s_movk_i32 s31, 9216
    s_movk_i32 s32, 1152
    s_cselect_b32 s31, 1152, s31
    s_cselect_b32 s32, {576*1152}, s32
    s_mov_b32 s46, {576*9216}
    s_mov_b32 s47, 0x00020000
    s_mul_i32 s29, s29, s32
    s_lshr_b32 s33, s30, 2
    s_mul_i32 s33, s33, 192
    s_and_b32 s34, s30, 3
    s_mul_i32 s34, s34, 24
    s_add_u32 s33, s33, s34
    s_add_u32 s33, s33, {PFROW0}
    s_lshl_b32 s34, s30, 1
    s_add_u32 s34, s34, s{sWv}
    s_sub_u32 s34, s34, 2
    s_mul_i32 s34, s34, 24
    s_cmp_ge_u32 s{sWv}, 2
    s_cselect_b32 s30, s34, s33
    s_mul_i32 s30, s30, s31
    s_add_u32 s29, s29, s30
    v_lshrrev_b32 v1, 3, v{vL}
    v_mul_lo_u32 v1, v1, s31
    v_and_b32 v2, 7, v{vL}
    v_lshl_add_u32 v1, v2, 4, v1
    s_lshl_b32 s31, s31, 3""")
    for g in range(3):
        for seg in range(9):
            a(f"buffer_load_dwordx4 v[{dummy}:{dummy+3}], v1, s[44:47], s29 offen offset:{128*seg}{K3M.PFMOD}")
        if g < 2: a("s_add_u32 s29, s29, s31")
def prefetch3(a, sPJ, sWv, vL, dummy):
    a(f"""s_and_b32 s29, s{sPJ}, 7
    s_lshr_b32 s30, s{sPJ}, 3
    s_lshl_b32 s30, s30, 1
    s_lshr_b32 s33, s{sWv}, 1
    s_add_u32 s30, s30, s33
    s_and_b32 s33, s{sWv}, 1
    s_cmp_eq_u32 s33, 1
    s_cselect_b32 s44, s38, s36
    s_cselect_b32 s45, s39, s37
    s_mov_b32 s46, {576*9216}
    s_mov_b32 s47, 0x00020000
    s_mul_i32 s29, s29, 1152
    s_lshr_b32 s33, s30, 2
    s_mul_i32 s33, s33, 192
    s_and_b32 s34, s30, 3
    s_mul_i32 s34, s34, 24
    s_add_u32 s33, s33, s34
    s_add_u32 s33, s33, {PFROW0}
    s_mul_i32 s30, s33, 9216
    s_add_u32 s29, s29, s30
    s_movk_i32 s31, 9216
    v_lshrrev_b32 v1, 3, v{vL}
    v_mul_lo_u32 v1, v1, s31
    v_and_b32 v2, 7, v{vL}
    v_lshl_add_u32 v1, v2, 4, v1
    s_lshl_b32 s31, s31, 3""")
    for g in range(3):
        for seg in range(9):
            a(f"buffer_load_dwordx4 v[{dummy}:{dummy+3}], v1, s[44:47], s29 offen offset:{128*seg}{K3M.PFMOD}")
        if g < 2: a("s_add_u32 s29, s29, s31")
PFROW0 = 96
for o in opts:
    if o.startswith("gu="): K3M.GUMOD = " " + o[3:]
    if o.startswith("dn="): K3M.DNMOD = " " + o[3:]
    if o.startswith("vst="): K1M.VST = " " + o[4:].replace("+", " ")
    if o.startswith("pst="): K3M.PST = " " + o[4:].replace("+", " ")
    if o.startswith("ost="): K2M.OST = " " + o[4:].replace("+", " ")
    if o == "swap": K2M.SWAP = True
    if o == "swap2": K2M.SWAP2 = True
    if o == "hack": K2M.HACK = True
    if o == "fastown": K2M.FASTOWN = True
    if o == "bar0": K3M.BAR0 = True
    if o.startswith("sl0="): K3M.SLEEP0 = int(o[4:])
    if o.startswith("sl1="): K3M.SLEEP1 = int(o[4:])
    if o == "wlds": K1M.WLDS = True
    if o.startswith("pfrow="): PFROW0 = int(o[6:])
PFALL = "pfall" in opts
PF3 = "pf3" in opts
NPF = 96 if "pf2" in opts else (48 if (PFALL or PF3) else 0)
PFFIRST = "pffirst" in opts
def k1():
    a = Asm()
    a("""s_cmp_ge_u32 s2, 256
    s_cbranch_scc1 k1_aux
    s_load_dwordx2 s[4:5], s[0:1], 0
    s_load_dwordx2 s[6:7], s[0:1], 48
    s_load_dwordx2 s[42:43], s[0:1], 88
    s_load_dwordx2 s[8:9], s[0:1], 96""")
    if "noprio" not in opts: a("s_setprio 3")
    a("s_waitcnt lgkmcnt(0)")
    stamp_init(a); stamp(a, 0)
    phase1(a, "k1", stat=True)
    stamp_flush(a, 0)
    a("s_endpgm")
    a.label("k1_aux")
    mo0 = 256 + (NPF if PFFIRST else 0)
    pf0 = 256 if PFFIRST else 256 + 144
    a(f"""s_cmp_ge_u32 s2, {256+144+NPF}
    s_cbranch_scc1 k1_end
    s_load_dwordx2 s[4:5], s[0:1], 0
    s_load_dwordx4 s[36:39], s[0:1], 56
    s_load_dwordx2 s[40:41], s[0:1], 72
    s_load_dwordx2 s[42:43], s[0:1], 88
    s_load_dwordx2 s[8:9], s[0:1], 96""")
    if NPF:
        a(f"""s_sub_u32 s28, s2, {pf0}
        s_cmp_lt_u32 s28, {NPF}
        s_cbranch_scc0 k1_moe
        v_lshrrev_b32 v5, 6, v0
        v_readfirstlane_b32 s26, v5
        v_and_b32 v5, 63, v0
        s_waitcnt lgkmcnt(0)""")
        stamp_init(a); stamp(a, 0)
        if PFALL:
            a("""s_cmp_eq_u32 s26, 3
            s_cbranch_scc1 k1_end
            s_sub_u32 s28, s2, 256""")
            prefetch(a, 28, 26, 5, 8)
        elif PF3:
            prefetch3(a, 28, 26, 5, 8)
        else: prefetch2(a, 28, 26, 5, 8)
        stamp(a, 1)
        a("s_waitcnt vmcnt(0)")
        stamp_flush(a, 0)
        a("s_endpgm")
    a.label("k1_moe")
    a(f"""s_sub_u32 s3, s2, {mo0}
    s_and_b32 s29, s3, 7
    s_mul_i32 s29, s29, 18
    s_lshr_b32 s3, s3, 3
    s_add_u32 s3, s3, s29
    s_waitcnt lgkmcnt(0)""")
    stamp_init(a); stamp(a, 0)
    if PFALL: a("s_sub_u32 s28, s2, 256")
    moe2(a, "k1m", 3, 28, late_down=("earlydown" not in opts), pf=PFALL)
    if K1M.STAMPS:
        a("""v_lshrrev_b32 v1, 6, v0
        s_nop 1
        v_readfirstlane_b32 s97, v1
        s_cmp_eq_u32 s97, 3
        s_cbranch_scc1 k1_hst""")
        stamp_flush(a, 0)
        a("s_endpgm")
        a.label("k1_hst")
        a(f"s_add_u32 s97, s2, {512-mo0}")
        stamp_flush(a, 0, swg="s97", tid=192)
    a.label("k1_end")
    return a.text()
def k2():
    a = Asm()
    a("""s_cmp_ge_u32 s2, 288
    s_cbranch_scc1 k2_end
    s_load_dwordx2 s[4:5], s[0:1], 0
    s_load_dwordx2 s[10:11], s[0:1], 80
    s_load_dwordx2 s[8:9], s[0:1], 96
    s_mov_b32 s3, s2
    s_waitcnt lgkmcnt(0)""")
    stamp_init(a); stamp(a, 0)
    phase2(a, "k2p", 3, moe=True)
    stamp_flush(a, 2)
    a.label("k2_end")
    return a.text()
launch = f"""; @launch kernel=k1_kernel grid=({256+144+NPF},1,1) block=(256,1,1) lds={(55360 + (4608 if K1M.WLDS else 0)) if K1M.XLDS else 18496}
; @launch kernel=k2_kernel grid=(288,1,1) block=(256,1,1) lds=9216
"""
src = HDR + launch + """.amdgcn_target "amdgcn-amd-amdhsa--gfx950"
.text
""" + kern("k1_kernel", k1()) + kern("k2_kernel", k2())
src += """.section .rodata,"a"
.p2align 6
""" + desc("k1_kernel", 256) + ".p2align 6\n" + desc("k2_kernel", 256 if K1M.STAMPS else 176)
for o in opts:
    if o.startswith("mprio"):
        pr = o.split("=")[1] if "=" in o else "3"
        src = src.replace("k1_moe:\n", "k1_moe:\n    s_setprio %s\n" % pr, 1)
    if o.startswith("dprio="):
        src = src.replace("    s_setprio 3\n", "    s_setprio %s\n" % o.split("=")[1], 1)
    if o.startswith("k2prio"):
        src = src.replace("k2p_own:\n", "k2p_own:\n    s_setprio 3\n", 1)
open(sys.argv[1], "w").write(src)
print("written", sys.argv[1], len(src))
```

```python
from asmlib import *
from k1 import *
OUTBYTES = XBYTES
OST = ""
SWAP = False
SWAP2 = False
HACK = False
FASTOWN = False

def phase2(a, L, sU=2, moe=False):
    SX, SO, SWS = 12, 16, 20
    sT1, sB, sWv = 24, 25, 26
    if moe: a("""s_mov_b32 s46, 0x249000
    s_load_dwordx2 s[44:45], s[8:9], s46""")
    srd(a, SX, 4, XBYTES); srd(a, SO, 10, OUTBYTES); srd(a, SWS, 8, 0x400000)
    a(f"""s_and_b32 s29, s{sU}, 31
    s_lshr_b32 s{sB}, s{sU}, 5
    s_xor_b32 s30, s{sB}, 1
    s_cmp_lt_u32 s{sB}, 2
    s_cselect_b32 s{sB}, s30, s{sB}
    s_xor_b32 s30, s29, 16
    s_cmp_eq_u32 s{sB}, 8
    s_cselect_b32 s29, s30, s29""")
    if SWAP and moe:
        hi = "s_cmp_eq_u32 s34, 1"
        a(f"""s_mov_b32 s34, 0
        s_mov_b32 s35, 12
        s_cmp_eq_u32 s{sB}, 8
        s_cselect_b32 s34, 1, s34
        s_cbranch_scc1 {L}_sw
        s_cmp_eq_u32 s{sB}, 4
        s_cbranch_scc1 {L}_sw""")
        if SWAP2: a(f"""s_mov_b32 s35, 6
        s_cmp_eq_u32 s{sB}, 1
        s_cselect_b32 s34, 1, s34
        s_cbranch_scc1 {L}_sw
        s_cmp_eq_u32 s{sB}, 5
        s_cbranch_scc1 {L}_sw""")
        a(f"s_branch {L}_nsw")
        a.label(f"{L}_sw")
        a(f"""s_xor_b32 s31, s29, 16
        s_cmp_eq_u32 s34, 1
        s_cselect_b32 s30, s29, s31
        s_and_b32 s31, s30, 7
        s_lshr_b32 s32, s30, 3
        s_lshl_b32 s31, s31, 1
        s_lshr_b32 s32, s32, 1
        s_add_u32 s31, s31, s32
        s_waitcnt lgkmcnt(0)
        s_and_b32 s32, s44, 31
        s_sub_u32 s33, 32, s32
        s_min_u32 s33, s32, s33
        s_cmp_eq_u32 s32, 16
        s_cselect_b32 s33, 0, s33
        s_cmp_eq_u32 s33, s31
        s_cbranch_scc0 {L}_nsw
        s_xor_b32 s29, s29, 16
        s_sub_u32 s{sB}, s35, s{sB}""")
        a.label(f"{L}_nsw")
    a(f"""s_and_b32 s30, s29, 7
    s_lshr_b32 s31, s29, 3
    s_lshl_b32 s30, s30, 1
    s_lshr_b32 s32, s31, 1
    s_add_u32 s30, s30, s32
    s_sub_u32 s32, 32, s30
    s_cmp_eq_u32 s30, 0
    s_cselect_b32 s32, 16, s32
    s_and_b32 s31, s31, 1
    s_cmp_eq_u32 s31, 1
    s_cselect_b32 s{sT1}, s32, s30
    v_lshrrev_b32 v5, 6, v0
    v_readfirstlane_b32 s{sWv}, v5
    v_and_b32 v5, 63, v0""")
    vL = 5
    a(f"""v_lshrrev_b32 v1, 3, v0
    v_and_b32 v2, 7, v0
    s_movk_i32 s29, 1152
    v_mul_lo_u32 v3, v1, s29
    v_lshlrev_b32 v4, 4, v2
    s_mul_i32 s30, s{sT1}, 73728
    s_lshl_b32 s31, s{sB}, 7
    s_add_u32 s30, s30, s31
    v_add3_u32 v3, v3, v4, s30
    buffer_load_dwordx4 v[8:11], v3, s[{SWS}:{SWS+3}], 0 offen
    s_mov_b32 s31, {32*1152}
    buffer_load_dwordx4 v[12:15], v3, s[{SWS}:{SWS+3}], s31 offen""")
    a(f"""v_lshrrev_b32 v4, 2, v2
    v_mul_u32_u24 v4, 4224, v4
    v_and_b32 v6, 3, v2
    v_lshlrev_b32 v6, 3, v6
    v_lshlrev_b32 v7, 5, v1
    v_add3_u32 v4, v4, v6, v7""")
    vN, vG, vT, vTM = 16, 17, 18, 19
    if HACK:
        a(f"""v_lshrrev_b32 v{vN}, 2, v{vL}
    v_and_b32 v{vG}, 3, v{vL}""")
    else:
        a(f"""v_and_b32 v{vN}, 15, v{vL}
    v_lshrrev_b32 v{vG}, 4, v{vL}""")
    a(f"""s_lshl_b32 s29, s{sWv}, 4
    v_add_u32 v{vT}, s29, v{vN}
    v_lshlrev_b32 v{vT}, 5, v{vT}
    v_add_u32 v{vT}, s{sT1}, v{vT}
    v_sub_u32 v{vTM}, 2048, v{vT}
    v_and_b32 v{vTM}, 2047, v{vTM}
    s_movk_i32 s29, 1152
    v_mul_lo_u32 v20, v{vT}, s29
    v_mul_lo_u32 v21, v{vTM}, s29
    v_lshlrev_b32 v22, 4, v{vG}
    s_lshl_b32 s30, s{sB}, 6
    s_add_u32 s31, s30, 2
    v_add3_u32 v20, v20, v22, s31
    s_sub_u32 s31, 1136, s30
    v_sub_u32 v21, v21, v22
    v_add_u32 v21, s31, v21
    buffer_load_dwordx4 v[24:27], v20, s[{SX}:{SX+3}], 0 offen
    buffer_load_dwordx4 v[28:31], v21, s[{SX}:{SX+3}], 0 offen
    v_and_b32 v22, 31, v{vT}
    v_lshrrev_b32 v23, 5, v{vT}
    v_lshl_add_u32 v22, v22, 6, v23
    v_lshlrev_b32 v22, 3, v22
    v_and_b32 v23, 31, v{vTM}
    v_lshrrev_b32 v36, 5, v{vTM}
    v_lshl_add_u32 v23, v23, 6, v36
    v_lshlrev_b32 v23, 3, v23
    s_mov_b32 s31, {WS_STATS}
    buffer_load_dwordx2 v[32:33], v22, s[{SWS}:{SWS+3}], s31 offen
    buffer_load_dwordx2 v[34:35], v23, s[{SWS}:{SWS+3}], s31 offen""")
    vN2, vG2 = vN, vG
    if HACK:
        vN2, vG2 = 38, 39
        a(f"""v_and_b32 v{vN2}, 15, v{vL}
    v_lshrrev_b32 v{vG2}, 4, v{vL}
    v_lshrrev_b32 v120, 2, v{vL}
    v_lshl_add_u32 v120, v{vG}, 4, v120
    v_lshlrev_b32 v120, 2, v120""")
    a(f"""v_subrev_u32 v36, 2, v20
    s_cmp_eq_u32 s{sB}, 0
    s_cbranch_scc0 {L}_nc0
    buffer_load_ushort v37, v36, s[{SX}:{SX+3}], 0 offen""")
    a.label(f"{L}_nc0")
    stamp(a, 1)
    T, vFE, vTH, vDL, vC2 = 40, 56, 57, 58, 60
    GC, GS = 64, 72
    a(f"""s_lshl_b32 s29, s{sWv}, 4
    v_add_u32 v{vFE}, s29, v{vN2}
    v_cvt_f32_u32 v{vFE}, v{vFE}
    v_mul_f32 v{vDL}, {fl(1/64)}, v{vFE}
    v_cos_f32 v{vC2}, v{vDL}
    v_cvt_f32_u32 v62, v{vG2}
    v_mul_f32 v62, 4.0, v62
    v_mul_f32 v{vTH}, v62, v{vDL}
    v_add_f32 v{vC2}, v{vC2}, v{vC2}
    v_and_b32 v63, 1, v{vN2}
    v_mul_u32_u24 v63, 0x8000, v63
    v_lshlrev_b32 v61, 16, v63
    v_or_b32 v63, v63, v61
    v_mov_b32 v59, 0x80008000""")
    cheb_group(a, T, vTH, vDL, vC2, 4, GC, GS)
    a(f"""v_add_f32 v62, {fl(16.0)}, v62
    v_mul_f32 v{vTH}, v62, v{vDL}""")
    cheb_group(a, T, vTH, vDL, vC2, 4, GC + 2, GS + 2)
    for i in range(4):
        a(f"v_xor_b32 v{GS+i}, v{GS+i}, v59")
    for i in range(4):
        a(f"v_xor_b32 v{GC+4+i}, v{GC+i}, v63")
        a(f"v_xor_b32 v{GS+4+i}, v{GS+i}, v63")
    stamp(a, 2)
    if moe:
        a(f"""s_waitcnt lgkmcnt(0)
        s_and_b32 s29, s44, 31
        s_sub_u32 s30, 2048, s44
        s_and_b32 s30, s30, 31
        s_cmp_eq_u32 s29, s{sT1}
        s_cbranch_scc1 {L}_own
        s_cmp_eq_u32 s30, s{sT1}
        s_cbranch_scc1 {L}_own""")
        p2tail(a, L + "n", False, locals())
        a("s_endpgm" if not P2_FALL else f"s_branch {L}_end")
        a.label(f"{L}_own")
        p2tail(a, L + "o", True, locals())
        a.label(f"{L}_end")
    else:
        p2tail(a, L, False, locals())

P2_FALL = True
def p2tail(a, L, own, E):
    SX, SO, SWS, sT1, sB, sWv = E["SX"], E["SO"], E["SWS"], E["sT1"], E["sB"], E["sWv"]
    vL, vN, vG, vT, vTM, GC, GS = E["vL"], E["vN"], E["vG"], E["vT"], E["vTM"], E["GC"], E["GS"]
    NO = 0
    YB = 8448
    if own:
        NO = 11
        SP = 48
        a(f"""s_add_u32 s48, s8, {WS_PART}
        s_addc_u32 s49, s9, 0
        s_mov_b32 s50, {144*2560}
        s_mov_b32 s51, 0x00020000
        v_lshrrev_b32 v128, 3, v0
        v_mul_u32_u24 v128, 2560, v128
        v_and_b32 v129, 7, v0
        v_lshlrev_b32 v129, 4, v129
        v_add_u32 v128, v128, v129
        s_mov_b32 s56, s48
        s_mov_b32 s57, s49
        s_mov_b32 s59, 0x00020000
        s_and_b32 s29, s44, 31
        s_cmp_eq_u32 s29, s{sT1}
        s_cselect_b32 s50, {144*2560}, 0
        s_sub_u32 s30, 2048, s44
        s_and_b32 s30, s30, 31
        s_cmp_eq_u32 s30, s{sT1}
        s_cselect_b32 s58, {144*2560}, 0
        s_lshl_b32 s29, s{sB}, 7
        s_sub_u32 s30, {(544+64)*4}, s29
        s_add_u32 s29, s29, 128""")
        for k in range(5):
            a(f"buffer_load_dwordx4 v[{132+4*k}:{135+4*k}], v128, s[48:51], s29 offen")
            a(f"buffer_load_dwordx4 v[{152+4*k}:{155+4*k}], v128, s[56:59], s30 offen")
            if k < 4: a(f"""s_add_u32 s29, s29, {32*2560}
            s_add_u32 s30, s30, {32*2560}""")
        a(f"""v_mov_b32 v172, 0
        s_mul_i32 s29, s{sWv}, {36*2560}
        s_add_u32 s29, s29, {31*4}
        v_mul_u32_u24 v130, 2560, v{vL}
        s_cmp_eq_u32 s{sB}, 0
        s_cselect_b32 s30, 36, 0
        v_cmp_gt_u32 vcc, s30, v{vL}
        s_and_saveexec_b64 s[52:53], vcc
        buffer_load_dword v172, v130, s[48:51], s29 offen
        s_mov_b64 exec, s[52:53]
        v_lshlrev_b32 v131, 2, v0
        v_mov_b32 v173, 0
        v_cmp_gt_u32 vcc, 80, v0
        s_and_saveexec_b64 s[52:53], vcc
        ds_write_b32 v131, v173 offset:{YB}
        s_mov_b64 exec, s[52:53]""")
    a(f"""s_cmp_eq_u32 s{sB}, 0
    s_cbranch_scc1 {L}_w5
    s_waitcnt vmcnt({4+NO})
    s_branch {L}_w
    """)
    a.label(f"{L}_w5")
    a(f"s_waitcnt vmcnt({5+NO})")
    a.label(f"{L}_w")
    a(f"""ds_write_b64 v4, v[8:9]
    ds_write_b64 v4, v[10:11] offset:2048
    ds_write_b64 v4, v[12:13] offset:1024
    ds_write_b64 v4, v[14:15] offset:{1024+2048}
    s_waitcnt lgkmcnt(0)
    s_barrier
    v_lshlrev_b32 v4, 3, v{vL}""")
    stamp(a, 3)
    AF = lambda p, ri, st: 80 + ((p*2 + ri)*2 + st)*4
    for st in range(2):
        for p in range(2):
            for ri in range(2):
                base = p*4224 + ri*2048 + st*1024
                r = AF(p, ri, st)
                a(f"ds_read_b64_tr_b16 v[{r}:{r+1}], v4 offset:{base}")
                a(f"ds_read_b64_tr_b16 v[{r+2}:{r+3}], v4 offset:{base+512}")
    ACC = 112
    for st in range(2):
        a(f"s_waitcnt lgkmcnt({8 if st == 0 else 0})")
        for p in range(2):
            acc = ACC + 4*p
            c = "0" if st == 0 else f"v[{acc}:{acc+3}]"
            a(f"v_mfma_f32_16x16x32_bf16 v[{acc}:{acc+3}], v[{AF(p,0,st)}:{AF(p,0,st)+3}], v[{GC+4*st}:{GC+4*st+3}], {c}")
        for p in range(2):
            acc = ACC + 4*p
            a(f"v_mfma_f32_16x16x32_bf16 v[{acc}:{acc+3}], v[{AF(p,1,st)}:{AF(p,1,st)+3}], v[{GS+4*st}:{GS+4*st+3}], v[{acc}:{acc+3}]")
    if HACK:
        for r in range(8): a(f"ds_bpermute_b32 v{80+r}, v120, v{ACC+r}")
        ACC = 80
    FO = own and FASTOWN and HACK
    if FO:
        a(f"""v_mov_b32 v173, s45
        v_mul_f32 v173, {fl(-1.4426950408889634)}, v173
        v_exp_f32 v173, v173
        v_lshlrev_b32 v131, 5, v{vG}
        v_sub_u32 v130, 96, v131
        v_mov_b32 v129, 0
        v_add_f32 v173, 1.0, v173
        v_rcp_f32 v173, v173
        v_and_b32 v121, 7, v{vL}
        v_lshlrev_b32 v121, 4, v121
        v_bfe_u32 v122, v{vL}, 4, 1
        v_lshl_add_u32 v121, v122, 7, v121
        v_lshrrev_b32 v122, 5, v{vL}
        v_lshl_add_u32 v121, v122, 2, v121
        v_cmp_eq_u32 vcc, s44, v{vT}
        v_cndmask_b32 v174, 0, v173, vcc
        v_cmp_eq_u32 vcc, s44, v{vTM}
        v_cndmask_b32 v175, 0, v173, vcc""")
    stamp(a, 4)
    a("s_waitcnt vmcnt(0)" + (" lgkmcnt(0)" if FO else ""))
    stamp(a, 5)
    if FO:
        for k in range(1, 5):
            for h in range(2):
                a(f"v_pk_add_f32 v[{132+2*h}:{133+2*h}], v[{132+2*h}:{133+2*h}], v[{132+4*k+2*h}:{133+4*k+2*h}]")
                a(f"v_pk_add_f32 v[{152+2*h}:{153+2*h}], v[{152+2*h}:{153+2*h}], v[{152+4*k+2*h}:{153+4*k+2*h}]")
        for r in [132, 133, 134, 135, 152, 153, 154, 155]: a(f"v_add_f32 v{r}, v{r}, v{r} row_ror:8 row_mask:0xf bank_mask:0xf")
        for j in range(4): a(f"v_permlane16_swap_b32 v{132+j}, v{152+j}")
        for j in range(4): a(f"v_add_f32 v{132+j}, v{132+j}, v{152+j}")
        a("""v_permlane32_swap_b32 v132, v133
        v_permlane32_swap_b32 v134, v135
        v_add_f32 v132, v132, v133
        v_add_f32 v134, v134, v135
        s_mov_b32 exec_lo, 0x00ff00ff
        s_mov_b32 exec_hi, 0x00ff00ff""")
        a(f"""ds_add_f32 v121, v132 offset:{YB}
        ds_add_f32 v121, v134 offset:{YB+8}
        s_mov_b64 exec, -1
        s_cmp_eq_u32 s{sB}, 0
        s_cbranch_scc0 {L}_nz
        ds_add_f32 v129, v172 offset:{YB+256}""")
        a.label(f"{L}_nz")
    if own and not FO:
        for k in range(1, 5):
            for h in range(2):
                a(f"v_pk_add_f32 v[{132+2*h}:{133+2*h}], v[{132+2*h}:{133+2*h}], v[{132+4*k+2*h}:{133+4*k+2*h}]")
                a(f"v_pk_add_f32 v[{152+2*h}:{153+2*h}], v[{152+2*h}:{153+2*h}], v[{152+4*k+2*h}:{153+4*k+2*h}]")
        R8 = [132, 133, 134, 135, 152, 153, 154, 155]
        for r in R8: a(f"v_add_f32 v{r}, v{r}, v{r} row_ror:8 row_mask:0xf bank_mask:0xf")
        for m in ("quad_perm:[1,0,3,2]", "quad_perm:[2,3,0,1]", "row_half_mirror", "row_mirror"):
            a(f"v_add_f32 v172, v172, v172 {m} row_mask:0xf bank_mask:0xf")
        reduce_hi(a, R8 + [172], list(range(136, 145)))
        a(f"""v_lshlrev_b32 v131, 4, v{vL}
        s_mov_b64 s[52:53], exec
        s_mov_b64 exec, 0xff""")
        for j in range(4):
            a(f"ds_add_f32 v131, v{132+j} offset:{YB+4*j}")
            a(f"ds_add_f32 v131, v{152+j} offset:{YB+128+4*j}")
        a(f"""s_mov_b64 exec, 1
        ds_add_f32 v131, v172 offset:{YB+256}
        s_mov_b64 exec, s[52:53]
        v_lshlrev_b32 v131, 5, v{vG}
        v_sub_u32 v130, 96, v131
        v_mov_b32 v129, 0
        v_mov_b32 v173, s45
        v_mul_f32 v173, {fl(-1.4426950408889634)}, v173
        v_exp_f32 v173, v173
        v_add_f32 v173, 1.0, v173
        v_rcp_f32 v173, v173
        v_cmp_eq_u32 vcc, s44, v{vT}
        v_cndmask_b32 v174, 0, v173, vcc
        v_cmp_eq_u32 vcc, s44, v{vTM}
        v_cndmask_b32 v175, 0, v173, vcc
        s_waitcnt lgkmcnt(0)
        s_barrier
        ds_read_b128 v[132:135], v131 offset:{YB}
        ds_read_b128 v[136:139], v131 offset:{YB+16}
        ds_read_b128 v[152:155], v130 offset:{YB+128}
        ds_read_b128 v[156:159], v130 offset:{YB+128+16}
        ds_read_b32 v172, v129 offset:{YB+256}
        s_waitcnt lgkmcnt(0)""")
    a(f"""v_mul_f32 v32, v32, v33
    v_add_f32 v33, 1.0, v33
    v_mul_f32 v34, v34, v35
    v_add_f32 v35, 1.0, v35""")
    if HACK and not own: a("s_waitcnt lgkmcnt(0)")
    for p in range(2):
        for h in range(2):
            s_ = ACC + 4*p + 2*h
            a(f"v_pk_add_f32 v[{40+4*p+2*h}:{41+4*p+2*h}], v[{s_}:{s_+1}], v[32:33] op_sel_hi:[1,0] neg_lo:[0,1] neg_hi:[0,1]")
            a(f"v_pk_add_f32 v[{48+4*p+2*h}:{49+4*p+2*h}], v[{s_}:{s_+1}], v[34:35] op_sel_hi:[1,0] neg_lo:[0,1] neg_hi:[0,1]")
    if FO:
        for i in range(4):
            a(f"v_lshlrev_b32 v56, 16, v{24+i}")
            a(f"v_and_b32 v57, 0xffff0000, v{24+i}")
            a(f"v_lshlrev_b32 v58, 16, v{28+i}")
            a(f"v_and_b32 v59, 0xffff0000, v{28+i}")
            a(f"v_fmac_f32 v{40+i}, v56, v33")
            a(f"v_fmac_f32 v{44+i}, v57, v33")
            a(f"v_fmac_f32 v{48+4+3-i}, v58, v35")
            a(f"v_fmac_f32 v{48+3-i}, v59, v35")
        a(f"""s_waitcnt lgkmcnt(0)
        s_barrier
        ds_read_b128 v[132:135], v131 offset:{YB}
        ds_read_b128 v[136:139], v131 offset:{YB+16}
        ds_read_b128 v[152:155], v130 offset:{YB+128}
        ds_read_b128 v[156:159], v130 offset:{YB+128+16}
        ds_read_b32 v172, v129 offset:{YB+256}
        s_waitcnt lgkmcnt(4)""")
        for k in range(8):
            if k == 4: a("s_waitcnt lgkmcnt(3)")
            a(f"v_fmac_f32 v{40+(k&1)*4+(k>>1)}, v{132+k}, v174")
        a("s_waitcnt lgkmcnt(0)")
        for k in range(8):
            kk = 7 - k
            a(f"v_fmac_f32 v{48+(kk&1)*4+(kk>>1)}, v{152+k}, v175")
        for i in range(4): a(f"v_cvt_pk_bf16_f32 v{64+i}, v{40+i}, v{44+i}")
        for i in range(4): a(f"v_cvt_pk_bf16_f32 v{68+i}, v{48+4+3-i}, v{48+3-i}")
    if own and not FO:
        for k in range(8):
            a(f"v_fmac_f32 v{40+(k&1)*4+(k>>1)}, v{132+k}, v174")
            kk = 7 - k
            a(f"v_fmac_f32 v{48+(kk&1)*4+(kk>>1)}, v{152+k}, v175")
    for i in range(0 if FO else 4):
        a(f"v_lshlrev_b32 v56, 16, v{24+i}")
        a(f"v_and_b32 v57, 0xffff0000, v{24+i}")
        a(f"v_fma_f32 v56, v56, v33, v{40+i}")
        a(f"v_fma_f32 v57, v57, v33, v{44+i}")
        a(f"v_cvt_pk_bf16_f32 v{64+i}, v56, v57")
    for i in range(0 if FO else 4):
        a(f"v_lshlrev_b32 v58, 16, v{28+i}")
        a(f"v_and_b32 v59, 0xffff0000, v{28+i}")
        a(f"v_fma_f32 v58, v58, v35, v{48+4+3-i}")
        a(f"v_fma_f32 v59, v59, v35, v{48+3-i}")
        a(f"v_cvt_pk_bf16_f32 v{68+i}, v58, v59")
    a(f"""buffer_store_dwordx4 v[64:67], v20, s[{SO}:{SO+3}], 0 offen{OST}
    buffer_store_dwordx4 v[68:71], v21, s[{SO}:{SO+3}], 0 offen{OST}""")
    a(f"""s_cmp_eq_u32 s{sB}, 0
    s_cbranch_scc0 {L}_done
    v_lshlrev_b32 v37, 16, v37
    v_fma_f32 v37, v37, v33, -v32
    {"v_fmac_f32 v37, v172, v174" if own else ""}
    v_cvt_pk_bf16_f32 v37, v37, v37
    {"s_mov_b32 exec_lo, 0x11111111" if HACK else "s_mov_b64 exec, 0xffff"}
    {"s_mov_b32 exec_hi, 0x11111111" if HACK else ""}
    buffer_store_short v37, v36, s[{SO}:{SO+3}], 0 offen""")
    a.label(f"{L}_done")
```
